```python
import torch

def _softmax(x, axis=-1):
    return torch.softmax(x, dim=axis)
def _gelu(x):
    return torch.nn.functional.gelu(x, approximate="tanh")
def _silu(x):
    return torch.nn.functional.silu(x)
def _sigmoid(x):
    return torch.sigmoid(x)
def _layernorm(x, axis=-1, eps=1e-5):
    m = x.mean(dim=axis, keepdim=True)
    v = x.var(dim=axis, keepdim=True, unbiased=False)
    return (x - m) / torch.sqrt(v + eps)
def _scatter_add(tgt, idx, src, axis=0):
    return tgt.clone().index_add_(axis, idx, src)
def _segment_sum(src, seg, n):
    out = torch.zeros((n,) + src.shape[1:], dtype=src.dtype)
    return out.index_add_(0, seg, src)
def _pad(x, pw):
    flat = tuple(v for pair in reversed(pw) for v in pair)
    return torch.nn.functional.pad(x, flat)

kernel_name = 'concat_heads__gqa_block_cached__gqa_block_cached__near_ridge'

def setup_inputs():

    _w = (lambda a: (lambda t: t.to(torch.bfloat16) if t.is_floating_point() else t)(torch.as_tensor(a)))
    def _A_setup():
        B, Sq, D = 16, 128, 640
        Hq, Hkv, Sk, Dh = 32, 32, 512, 192
        assert Hq % Hkv == 0, (Hq, Hkv)
        return {
            "x": _w((lambda *s: torch.randn(*s, dtype=torch.bfloat16) * 0.8)(B, Sq, D)),
            "k_cache": _w((lambda *s: torch.randn(*s, dtype=torch.bfloat16) * 0.8)(B, Hkv, Sk, Dh)),
            "v_cache": _w((lambda *s: torch.randn(*s, dtype=torch.bfloat16) * 0.05)(B, Hkv, Sk, Dh)),
            "wq": _w((lambda *s: torch.randn(*s, dtype=torch.bfloat16) * 0.8)(D, Hq * Dh) * (D ** -0.5)),
            "wo": _w((lambda *s: torch.randn(*s, dtype=torch.bfloat16) * 0.05)(Hq * Dh, D) * ((Hq * Dh) ** -0.5)),
        }
    _A_in = _A_setup()

    def _B_setup():
        B, Sq, D = 16, 128, 640
        Hq, Hkv, Sk, Dh = 32, 32, 512, 192
        assert Hq % Hkv == 0, (Hq, Hkv)
        return {
            "x": _w((lambda *s: torch.randn(*s, dtype=torch.bfloat16) * 0.8)(B, Sq, D)),
            "k_cache": _w((lambda *s: torch.randn(*s, dtype=torch.bfloat16) * 0.8)(B, Hkv, Sk, Dh)),
            "v_cache": _w((lambda *s: torch.randn(*s, dtype=torch.bfloat16) * 0.05)(B, Hkv, Sk, Dh)),
            "wq": _w((lambda *s: torch.randn(*s, dtype=torch.bfloat16) * 0.8)(D, Hq * Dh) * (D ** -0.5)),
            "wo": _w((lambda *s: torch.randn(*s, dtype=torch.bfloat16) * 0.05)(Hq * Dh, D) * ((Hq * Dh) ** -0.5)),
        }
    _B_in = _B_setup()

    return {
        "A_x": _A_in["x"],
        "A_k_cache": _A_in["k_cache"],
        "A_v_cache": _A_in["v_cache"],
        "A_wq": _A_in["wq"],
        "A_wo": _A_in["wo"],
        "B_x": _B_in["x"],
        "B_k_cache": _B_in["k_cache"],
        "B_v_cache": _B_in["v_cache"],
        "B_wq": _B_in["wq"],
        "B_wo": _B_in["wo"],
    }

def reference(A_x, A_k_cache, A_v_cache, A_wq, A_wo, B_x, B_k_cache, B_v_cache, B_wq, B_wo):
    def _A_ref(x, k_cache, v_cache, wq, wo):
        B, Sq, D = x.shape
        Hq, Dh = 32, 192
        Hkv = k_cache.shape[1]
        rep = Hq // Hkv
        q = (lambda x, *d: x.permute(*d))((x @ wq).reshape(B, Sq, Hq, Dh), 0, 2, 1, 3)
        k = (lambda x, n, axis: torch.repeat_interleave(x, n, dim=axis))(k_cache, rep, axis=1)
        v = (lambda x, n, axis: torch.repeat_interleave(x, n, dim=axis))(v_cache, rep, axis=1)
        scores = torch.einsum("bhqd,bhkd->bhqk", q, k) * (Dh ** -0.5)
        p = _softmax(scores, axis=-1)
        o = torch.einsum("bhqk,bhkd->bhqd", p, v)
        return (lambda x, *d: x.permute(*d))(o, 0, 2, 1, 3).reshape(B, Sq, Hq * Dh) @ wo

    def _B_ref(x, k_cache, v_cache, wq, wo):
        B, Sq, D = x.shape
        Hq, Dh = 32, 192
        Hkv = k_cache.shape[1]
        rep = Hq // Hkv
        q = (lambda x, *d: x.permute(*d))((x @ wq).reshape(B, Sq, Hq, Dh), 0, 2, 1, 3)
        k = (lambda x, n, axis: torch.repeat_interleave(x, n, dim=axis))(k_cache, rep, axis=1)
        v = (lambda x, n, axis: torch.repeat_interleave(x, n, dim=axis))(v_cache, rep, axis=1)
        scores = torch.einsum("bhqd,bhkd->bhqk", q, k) * (Dh ** -0.5)
        p = _softmax(scores, axis=-1)
        o = torch.einsum("bhqk,bhkd->bhqd", p, v)
        return (lambda x, *d: x.permute(*d))(o, 0, 2, 1, 3).reshape(B, Sq, Hq * Dh) @ wo

    a = _A_ref(A_x, A_k_cache, A_v_cache, A_wq, A_wo)
    b = _B_ref(B_x, B_k_cache, B_v_cache, B_wq, B_wo)
    return torch.concatenate([a, b], axis=-1)
```

```python
import sys, math

NAME = "concat_heads__gqa_block_cached__gqa_block_cached__near_ridge"

class Asm:
    def __init__(self):
        self.lines = []
        self.vm = []
        self.lg = []
    def e(self, s):
        self.lines.append("    " + s)
    def label(self, s):
        self.lines.append(s + ":")
    def raw(self, s):
        self.lines.append(s)
    def c(self, s):
        self.lines.append("    ; " + s)
    def vmem(self, s, tag):
        self.e(s); self.vm.append(tag)
    def wait_vm(self, tags):
        if isinstance(tags, str) or isinstance(tags, tuple): tags = [tags]
        last = -1
        for i, t in enumerate(self.vm):
            if t in tags: last = i
        if last < 0: return
        n = len(self.vm) - 1 - last
        assert n <= 63
        self.e(f"s_waitcnt vmcnt({n})")
        self.vm = self.vm[last+1:]
    def wait_vm_all(self):
        self.e("s_waitcnt vmcnt(0)"); self.vm = []
    def lds(self, s, tag):
        self.e(s); self.lg.append(tag)
    def wait_lg(self, tag):
        last = -1
        for i, t in enumerate(self.lg):
            if t == tag: last = i
        if last < 0: return
        n = len(self.lg) - 1 - last
        assert n <= 15, n
        self.e(f"s_waitcnt lgkmcnt({n})")
        self.lg = self.lg[last+1:]
    def wait_lg_all(self):
        self.e("s_waitcnt lgkmcnt(0)"); self.lg = []
    def nop(self, n):
        while n > 0:
            k = min(n, 8)
            self.e(f"s_nop {k-1}")
            n -= k
    def text(self):
        return "\n".join(self.lines) + "\n"

def vr(a, n=1):
    return f"v{a}" if n == 1 else f"v[{a}:{a+n-1}]"
def sr(a, n=1):
    return f"s{a}" if n == 1 else f"s[{a}:{a+n-1}]"

SLOT = 24576
CSC = (192 ** -0.5) * math.log2(math.e)
import struct
def f32bits(x):
    return struct.unpack("<I", struct.pack("<f", x))[0]

def kernel1(a):
    ACC = 0; QF = 96; S = 144; P = 176; AB = 192
    XB = 96
    vKa = 224
    vE, vO, vE2, vO2 = 228, 229, 230, 231
    vDK = 232
    vDV = 238
    vDW = 241
    vX = 244; vM = 245; vL = 246
    T0, T1, T2, T3, T4, T5 = 247, 248, 249, 250, 251, 252
    vWE, vWO = 253, 254
    vST = 255
    sK, sV, sW, sX, sO = 24, 28, 32, 36, 40
    sWv = 44
    sM0 = 45
    sC = 46
    sT = 47; sT2 = 48; sT3 = 49
    a.label(NAME + "_k1_kernel")
    a.e("s_cmp_ge_u32 s2, 1024")
    a.e("s_cbranch_scc1 K1_END")
    a.e("s_load_dwordx8 s[8:15], s[0:1], 0")
    a.e("s_load_dwordx8 s[16:23], s[0:1], 40")
    a.e("s_load_dwordx2 s[4:5], s[0:1], 96")
    a.e("v_lshrrev_b32 v1, 6, v0")
    a.e("v_and_b32 v2, 63, v0")
    a.e("s_nop 0")
    a.e(f"v_readfirstlane_b32 s{sWv}, v1")
    a.e("s_lshr_b32 s3, s2, 9")
    a.e("s_and_b32 s6, s2, 511")
    a.e("s_and_b32 s7, s2, 31")
    a.e("s_lshr_b32 s50, s6, 5")
    a.e("s_waitcnt lgkmcnt(0)")
    a.e("s_cmp_eq_u32 s3, 0")
    for i in range(8):
        a.e(f"s_cselect_b32 s{8+i}, s{8+i}, s{16+i}")
    a.e(f"s_mul_i32 s{sT}, s6, 196608")
    a.e(f"s_add_u32 s{sK}, s10, s{sT}")
    a.e(f"s_addc_u32 s{sK+1}, s11, 0")
    a.e(f"s_mov_b32 s{sK+2}, 196608")
    a.e(f"s_mov_b32 s{sK+3}, 0x00020000")
    a.e(f"s_add_u32 s{sV}, s12, s{sT}")
    a.e(f"s_addc_u32 s{sV+1}, s13, 0")
    a.e(f"s_mov_b32 s{sV+2}, 196608")
    a.e(f"s_mov_b32 s{sV+3}, 0x00020000")
    a.e(f"s_mul_i32 s{sT}, s7, 384")
    a.e(f"s_add_u32 s{sW}, s14, s{sT}")
    a.e(f"s_addc_u32 s{sW+1}, s15, 0")
    a.e(f"s_sub_u32 s{sW+2}, {640*12288}, s{sT}")
    a.e(f"s_mov_b32 s{sW+3}, 0x00020000")
    a.e(f"s_mul_i32 s{sT}, s50, 163840")
    a.e(f"s_add_u32 s{sX}, s8, s{sT}")
    a.e(f"s_addc_u32 s{sX+1}, s9, 0")
    a.e(f"s_mov_b32 s{sX+2}, 163840")
    a.e(f"s_mov_b32 s{sX+3}, 0x00020000")
    a.e(f"s_mul_i32 s{sT}, s2, 49152")
    a.e(f"s_add_u32 s{sO}, s4, s{sT}")
    a.e(f"s_addc_u32 s{sO+1}, s5, 0")
    a.e(f"s_mov_b32 s{sO+2}, 49152")
    a.e(f"s_mov_b32 s{sO+3}, 0x00020000")
    a.e(f"s_mul_i32 s{sM0}, s{sWv}, 6144")
    a.e(f"s_mov_b32 s{sC}, 0x{f32bits(CSC):08x}")
    a.e(f"s_mul_i32 s{sT2}, s{sWv}, {16*12288}")
    for i in range(6):
        a.e(f"v_add_u32 v3, {64*i}, v2")
        a.e(f"v_mul_u32_u24 v4, 0xaab, v3")
        a.e(f"v_lshrrev_b32 v4, 16, v4")
        a.e(f"v_mul_u32_u24 v5, 24, v4")
        a.e(f"v_sub_u32 v5, v3, v5")
        a.e(f"v_bfe_u32 v6, v4, 1, 3")
        a.e(f"v_xor_b32 v6, v5, v6")
        a.e(f"v_lshlrev_b32 v6, 4, v6")
        a.e(f"v_mul_u32_u24 v7, 384, v4")
        a.e(f"v_add_u32 v6, v6, v7")
        a.e(f"v_add_u32 v6, s{sM0}, v6")
        if i % 3:
            a.e(f"v_subrev_u32 v{vDK+i}, {1024*(i%3)}, v6")
        else:
            a.e(f"v_mov_b32 v{vDK+i}, v6")
        if i < 3:
            a.e(f"v_bfe_u32 v6, v4, 1, 1")
            a.e(f"v_lshlrev_b32 v6, 2, v6")
            a.e(f"v_xor_b32 v6, v5, v6")
            a.e(f"v_lshlrev_b32 v6, 4, v6")
            a.e(f"v_add_u32 v8, v6, v7")
            a.e(f"v_add_u32 v8, s{sM0}, v8")
            if i: a.e(f"v_subrev_u32 v{vDV+i}, {1024*i}, v8")
            else: a.e(f"v_mov_b32 v{vDV+i}, v8")
            a.e(f"v_mul_u32_u24 v8, 12288, v4")
            a.e(f"v_add_u32 v8, v6, v8")
            a.e(f"v_add_u32 v8, s{sT2}, v8")
            if i: a.e(f"v_subrev_u32 v{vDW+i}, {1024*i}, v8")
            else: a.e(f"v_mov_b32 v{vDW+i}, v8")
    a.e("v_and_b32 v3, 31, v2")
    a.e("v_lshrrev_b32 v4, 5, v2")
    a.e("v_bfe_u32 v5, v3, 1, 3")
    a.e("v_mul_u32_u24 v6, 384, v3")
    for bi in range(4):
        a.e(f"v_add_u32 v7, {2*bi}, v4")
        a.e(f"v_xor_b32 v7, v7, v5")
        a.e(f"v_lshl_add_u32 v{vKa+bi}, v7, 4, v6")
    a.e("v_bfe_u32 v5, v2, 2, 2")
    a.e("v_and_b32 v6, 3, v2")
    a.e("v_and_b32 v7, 1, v6")
    a.e("v_lshlrev_b32 v7, 1, v7")
    a.e("v_lshrrev_b32 v6, 1, v6")
    a.e("v_or_b32 v6, v6, v7")
    a.e("v_lshlrev_b32 v6, 3, v6")
    a.e("v_bfe_u32 v7, v2, 4, 1")
    a.e("v_lshl_add_u32 v6, v7, 5, v6")
    a.e("v_bfe_u32 v7, v5, 1, 1")
    a.e("v_lshlrev_b32 v7, 6, v7")
    a.e("v_lshl_add_u32 v8, v4, 2, v5")
    a.e("v_mul_u32_u24 v8, 384, v8")
    a.e("v_add_u32 v8, v8, v6")
    a.e(f"v_add_u32 v{vE}, v8, v7")
    a.e(f"v_sub_u32 v{vO}, v8, v7")
    a.e(f"v_add_u32 v{vE2}, {2*SLOT}, v{vE}")
    a.e(f"v_add_u32 v{vO2}, {2*SLOT}, v{vO}")
    a.e("v_lshl_add_u32 v8, v4, 5, v5")
    a.e("v_mul_u32_u24 v8, 384, v8")
    a.e("v_add_u32 v8, v8, v6")
    a.e(f"v_add_u32 v{vWE}, v8, v7")
    a.e(f"v_sub_u32 v{vWO}, v8, v7")
    a.e(f"s_lshl_b32 s{sT}, s{sWv}, 5")
    a.e(f"v_add_u32 v8, s{sT}, v3")
    a.e(f"v_mul_u32_u24 v8, 1280, v8")
    a.e(f"v_lshl_add_u32 v{vX}, v4, 6, v8")
    a.e(f"s_mul_i32 s{sT}, s{sWv}, 12288")
    a.e(f"v_lshlrev_b32 v8, 4, v2")
    a.e(f"v_add_u32 v{vST}, s{sT}, v8")
    a.e(f"v_mov_b32 v{vM}, 0xff800000")
    a.e(f"v_mov_b32 v{vL}, 0")

    NT = 26
    def tile_kind(t):
        if t < 10: return ("W", t)
        t -= 10
        return ("K" if t % 2 == 0 else "V", t // 2)

    def dma(t):
        if t >= NT: return
        kind, idx = tile_kind(t)
        slot = t % 3
        for half in range(2):
            a.e(f"s_add_u32 m0, s{sM0}, {slot*SLOT + half*3072}")
            if kind == "W":
                a.e(f"s_mov_b32 s{sT3}, {idx*64*12288 + half*8*12288}")
            elif kind == "V":
                a.e(f"s_mov_b32 s{sT3}, {idx*SLOT + half*3072}")
            else:
                a.e(f"s_mov_b32 s{sT3}, {idx*SLOT}")
            for i in range(3):
                if kind == "W": vo, srd = vDW+i, sW
                elif kind == "V": vo, srd = vDV+i, sV
                else: vo, srd = vDK+half*3+i, sK
                off = f" offset:{1024*i}" if i else ""
                a.vmem(f"buffer_load_dwordx4 v{vo}, s[{srd}:{srd+3}], s{sT3} offen{off} lds", ("T", t))
    def xload(ch):
        if ch >= 10: return
        buf = XB + (ch % 3) * 16
        for ks in range(4):
            a.vmem(f"buffer_load_dwordx4 {vr(buf+4*ks,4)}, v{vX}, s[{sX}:{sX+3}], 0 offen offset:{ch*128+ks*16}", ("X", ch))

    dma(0); xload(0); dma(1); xload(1)

    LOOK = 6
    def run_frags(frags, mfma_of):
        n = len(frags)
        def issue(i):
            buf = AB + (i % 8) * 4
            for k, ins in enumerate(frags[i]):
                a.lds(ins(buf), ("F", i))
        for i in range(min(LOOK, n)): issue(i)
        for i in range(n):
            a.wait_lg(("F", i))
            mfma_of(i, AB + (i % 8) * 4)
            if i + LOOK < n: issue(i + LOOK)

    for t in range(NT):
        kind, idx = tile_kind(t)
        slot = t % 3
        a.c(f"---- tile {t} {kind}{idx} slot {slot}")
        tags = [("T", t)]
        if kind == "W": tags.append(("X", idx))
        a.wait_vm(tags)
        a.e("s_barrier")
        dma(t + 2)
        if kind == "W": xload(idx + 2)
        if kind == "W":
            frags = []; info = []
            xb = XB + (idx % 3) * 16
            for ks in range(4):
                for mt in range(6):
                    base = vWE if mt % 2 == 0 else vWO
                    o0 = slot*SLOT + (ks*8)*384 + mt*64
                    o1 = o0 + 4*384
                    frags.append([lambda d, base=base, o=o0: f"ds_read_b64_tr_b16 {vr(d,2)}, v{base} offset:{o}",
                                  lambda d, base=base, o=o1: f"ds_read_b64_tr_b16 {vr(d+2,2)}, v{base} offset:{o}"])
                    info.append((ks, mt))
            def mf(i, buf):
                ks, mt = info[i]
                cc = "0" if (idx == 0 and ks == 0) else vr(ACC+16*mt, 16)
                a.e(f"v_mfma_f32_32x32x16_bf16 {vr(ACC+16*mt,16)}, {vr(buf,4)}, {vr(xb+4*ks,4)}, {cc}")
            run_frags(frags, mf)
            if idx == 9:
                a.nop(12)
                for s in range(12):
                    for k in range(4):
                        src = ACC + 16*(s//2) + 8*(s%2) + 2*k
                        a.e(f"v_cvt_pk_bf16_f32 v{QF+4*s+k}, v{src}, v{src+1}")
        elif kind == "K":
            frags = []; info = []
            for s in range(12):
                for kt in range(2):
                    j0 = 2*s; aa = j0 // 8; bi = (j0 % 8)//2
                    o = slot*SLOT + kt*12288 + aa*128
                    frags.append([lambda d, bi=bi, o=o: f"ds_read_b128 {vr(d,4)}, v{vKa+bi} offset:{o}"])
                    info.append((s, kt))
            def mf(i, buf):
                s, kt = info[i]
                cc = "0" if s == 0 else vr(S+16*kt, 16)
                a.e(f"v_mfma_f32_32x32x16_bf16 {vr(S+16*kt,16)}, {vr(buf,4)}, {vr(QF+4*s,4)}, {cc}")
            run_frags(frags, mf)
            a.nop(12)
            a.e(f"v_max3_f32 v{T0}, v{S}, v{S+1}, v{S+2}")
            a.e(f"v_max3_f32 v{T1}, v{S+16}, v{S+17}, v{S+18}")
            for k in range(3, 15, 2):
                a.e(f"v_max3_f32 v{T0}, v{T0}, v{S+k}, v{S+k+1}")
                a.e(f"v_max3_f32 v{T1}, v{T1}, v{S+16+k}, v{S+16+k+1}")
            a.e(f"v_max3_f32 v{T0}, v{T0}, v{S+15}, v{S+31}")
            a.e(f"v_max3_f32 v{T0}, v{T0}, v{T1}, v{vM}")
            a.e(f"v_mov_b32 v{T1}, v{T0}")
            a.nop(2)
            a.e(f"v_permlane32_swap_b32 v{T0}, v{T1}")
            a.nop(2)
            a.e(f"v_max_f32 v{T0}, v{T0}, v{T1}")
            a.e(f"v_sub_f32 v{T2}, v{vM}, v{T0}")
            a.e(f"v_mul_f32 v{T2}, s{sC}, v{T2}")
            a.e(f"v_exp_f32 v{T2}, v{T2}")
            a.e(f"v_mov_b32 v{vM}, v{T0}")
            a.e(f"v_mul_f32 v{T3}, s{sC}, v{T0}")
            a.e(f"v_sub_f32 v{T3}, 0, v{T3}")
            for k in range(32):
                a.e(f"v_fma_f32 v{S+k}, v{S+k}, s{sC}, v{T3}")
            for k in range(32):
                a.e(f"v_exp_f32 v{S+k}, v{S+k}")
            a.e(f"v_mul_f32 v{vL}, v{vL}, v{T2}")
            a.e(f"v_add_f32 v{T0}, v{S}, v{S+1}")
            a.e(f"v_add_f32 v{T1}, v{S+2}, v{S+3}")
            for k in range(4, 32, 2):
                a.e(f"v_add_f32 v{T0}, v{T0}, v{S+k}")
                a.e(f"v_add_f32 v{T1}, v{T1}, v{S+k+1}")
            a.e(f"v_add_f32 v{T0}, v{T0}, v{T1}")
            a.e(f"v_add_f32 v{vL}, v{vL}, v{T0}")
            for k in range(16):
                a.e(f"v_cvt_pk_bf16_f32 v{P+k}, v{S+2*k}, v{S+2*k+1}")
            if idx > 0:
                for k in range(96):
                    a.e(f"v_mul_f32 v{ACC+k}, v{ACC+k}, v{T2}")
        else:
            frags = []; info = []
            for ks in range(4):
                for mt in range(6):
                    if slot == 2:
                        base = vE2 if mt % 2 == 0 else vO2; so = 0
                    else:
                        base = vE if mt % 2 == 0 else vO; so = slot*SLOT
                    o0 = so + (16*ks)*384 + mt*64
                    o1 = o0 + 8*384
                    frags.append([lambda d, base=base, o=o0: f"ds_read_b64_tr_b16 {vr(d,2)}, v{base} offset:{o}",
                                  lambda d, base=base, o=o1: f"ds_read_b64_tr_b16 {vr(d+2,2)}, v{base} offset:{o}"])
                    info.append((ks, mt))
            def mf(i, buf):
                ks, mt = info[i]
                cc = "0" if (idx == 0 and ks == 0) else vr(ACC+16*mt, 16)
                a.e(f"v_mfma_f32_32x32x16_bf16 {vr(ACC+16*mt,16)}, {vr(buf,4)}, {vr(P+4*ks,4)}, {cc}")
            run_frags(frags, mf)
    a.e(f"v_mov_b32 v{T1}, v{vL}")
    a.nop(2)
    a.e(f"v_permlane32_swap_b32 v{vL}, v{T1}")
    a.nop(2)
    a.e(f"v_add_f32 v{vL}, v{vL}, v{T1}")
    a.e(f"v_rcp_f32 v{T2}, v{vL}")
    a.nop(12)
    for k in range(96):
        a.e(f"v_mul_f32 v{ACC+k}, v{ACC+k}, v{T2}")
    for s in range(12):
        for k in range(4):
            src = ACC + 16*(s//2) + 8*(s%2) + 2*k
            a.e(f"v_cvt_pk_bf16_f32 v{QF+4*s+k}, v{src}, v{src+1}")
    for s in range(12):
        a.vmem(f"buffer_store_dwordx4 {vr(QF+4*s,4)}, v{vST}, s[{sO}:{sO+3}], 0 offen offset:{0 if False else (s*1024)%4096}" if s < 4 else
               f"buffer_store_dwordx4 {vr(QF+4*s,4)}, v{vST}, s[{sO}:{sO+3}], s{50+s//4-1} offen offset:{(s*1024)%4096}", "ST") if False else None
    a.e("s_mov_b32 s51, 4096")
    a.e("s_mov_b32 s52, 8192")
    for s in range(12):
        so = "0" if s < 4 else ("s51" if s < 8 else "s52")
        a.vmem(f"buffer_store_dwordx4 {vr(QF+4*s,4)}, v{vST}, s[{sO}:{sO+3}], {so} offen offset:{(s*1024)%4096}", "ST")
    a.wait_vm_all()
    a.label("K1_END")
    a.e("s_endpgm")

def kernel2(a):
    ACC = 0
    AB = 96
    BB = 128
    vD = 180
    vA = 186
    vB = 187
    vST = 188
    sWo, sOw, sOut = 24, 28, 32
    sWv, sM0, sT, sT3 = 44, 45, 47, 49
    SL = 20480
    a.label(NAME + "_k2_kernel")
    a.e("s_cmp_ge_u32 s2, 128")
    a.e("s_cbranch_scc1 K2_END")
    a.e("s_load_dwordx2 s[8:9], s[0:1], 32")
    a.e("s_load_dwordx2 s[10:11], s[0:1], 72")
    a.e("s_load_dwordx2 s[12:13], s[0:1], 80")
    a.e("s_load_dwordx2 s[4:5], s[0:1], 96")
    a.e("v_lshrrev_b32 v1, 6, v0")
    a.e("v_and_b32 v2, 63, v0")
    a.e("s_nop 0")
    a.e(f"v_readfirstlane_b32 s{sWv}, v1")
    a.e("s_lshr_b32 s3, s2, 2")
    a.e("s_and_b32 s6, s2, 3")
    a.e("s_lshr_b32 s7, s3, 4")
    a.e("s_waitcnt lgkmcnt(0)")
    a.e("s_cmp_eq_u32 s7, 0")
    a.e("s_cselect_b32 s8, s8, s10")
    a.e("s_cselect_b32 s9, s9, s11")
    a.e(f"s_mul_i32 s{sT}, s6, 320")
    a.e(f"s_add_u32 s{sWo}, s8, s{sT}")
    a.e(f"s_addc_u32 s{sWo+1}, s9, 0")
    a.e(f"s_sub_u32 s{sWo+2}, {6144*1280}, s{sT}")
    a.e(f"s_mov_b32 s{sWo+3}, 0x00020000")
    a.e(f"s_mul_i32 s{sT}, s3, {32*49152}")
    a.e(f"s_add_u32 s{sOw}, s4, s{sT}")
    a.e(f"s_addc_u32 s{sOw+1}, s5, 0")
    a.e(f"s_mov_b32 s{sOw+2}, {32*49152}")
    a.e(f"s_mov_b32 s{sOw+3}, 0x00020000")
    a.e("s_and_b32 s50, s3, 15")
    a.e(f"s_mul_i32 s{sT}, s50, {128*2560}")
    a.e(f"s_mul_i32 s51, s7, 1280")
    a.e(f"s_add_u32 s{sT}, s{sT}, s51")
    a.e(f"s_mul_i32 s51, s6, 320")
    a.e(f"s_add_u32 s{sT}, s{sT}, s51")
    a.e(f"s_add_u32 s{sOut}, s12, s{sT}")
    a.e(f"s_addc_u32 s{sOut+1}, s13, 0")
    a.e(f"s_sub_u32 s{sOut+2}, {16*128*2560}, s{sT}")
    a.e(f"s_mov_b32 s{sOut+3}, 0x00020000")
    a.e(f"s_mul_i32 s{sM0}, s{sWv}, 5120")
    a.e(f"s_mul_i32 s{sT}, s{sWv}, {16*1280}")
    for i in range(5):
        a.e(f"v_add_u32 v3, {64*i}, v2")
        a.e(f"v_mul_u32_u24 v4, 3277, v3")
        a.e(f"v_lshrrev_b32 v4, 16, v4")
        a.e(f"v_mul_u32_u24 v5, 20, v4")
        a.e(f"v_sub_u32 v5, v3, v5")
        a.e(f"v_mul_u32_u24 v6, 1280, v4")
        a.e(f"v_lshl_add_u32 v6, v5, 4, v6")
        a.e(f"v_add_u32 v6, s{sT}, v6")
        if i in (1, 2, 3):
            a.e(f"v_subrev_u32 v{vD+i}, {1024*i}, v6")
        else:
            a.e(f"v_mov_b32 v{vD+i}, v6")
    a.e("v_lshrrev_b32 v4, 5, v2")
    a.e("v_bfe_u32 v5, v2, 2, 2")
    a.e("v_and_b32 v6, 3, v2")
    a.e("v_and_b32 v7, 1, v6")
    a.e("v_lshlrev_b32 v7, 1, v7")
    a.e("v_lshrrev_b32 v6, 1, v6")
    a.e("v_or_b32 v6, v6, v7")
    a.e("v_lshlrev_b32 v6, 3, v6")
    a.e("v_bfe_u32 v7, v2, 4, 1")
    a.e("v_lshl_add_u32 v6, v7, 5, v6")
    a.e("v_lshl_add_u32 v8, v4, 3, v5")
    a.e("v_mul_u32_u24 v8, 320, v8")
    a.e(f"v_add_u32 v{vA}, v8, v6")
    a.e(f"s_mul_i32 s{sT}, s{sWv}, 12288")
    a.e(f"v_lshlrev_b32 v8, 4, v2")
    a.e(f"v_add_u32 v{vB}, s{sT}, v8")
    a.e("v_and_b32 v3, 31, v2")
    a.e(f"s_lshl_b32 s{sT}, s{sWv}, 5")
    a.e(f"v_add_u32 v8, s{sT}, v3")
    a.e(f"v_mul_u32_u24 v8, 2560, v8")
    a.e(f"v_lshl_add_u32 v{vST}, v4, 4, v8")
    def dma(slot):
        a.e(f"s_add_u32 m0, s{sM0}, {slot*SL}")
        a.e("s_nop 0")
        for i in range(4):
            off = f" offset:{1024*i}" if i else ""
            a.vmem(f"buffer_load_dwordx4 v{vD+i}, s[{sWo}:{sWo+3}], s61 offen{off} lds", ("T", slot))
        a.e(f"s_add_u32 m0, s{sM0}, {slot*SL+4096}")
        a.e("s_nop 0")
        a.vmem(f"buffer_load_dwordx4 v{vD+4}, s[{sWo}:{sWo+3}], s61 offen lds", ("T", slot))
        a.e(f"s_add_u32 s61, s61, {64*1280}")
    def bload(slot, sub):
        for ks in range(4):
            off = f" offset:{1024*ks}" if ks else ""
            a.vmem(f"buffer_load_dwordx4 {vr(BB+slot*16+4*ks,4)}, v{vB}, s[{sOw}:{sOw+3}], s62 offen{off}", ("B", slot))
        a.e(f"s_add_u32 s62, s62, {4096 if sub < 2 else 49152-8192}")
    a.e("s_mov_b32 s61, 0")
    a.e("s_mov_b32 s62, 0")
    for k in range(5):
        a.e(f"v_mov_b32 v{250+k}, 0")
    for k in range(80):
        a.e(f"v_mov_b32 v{ACC+k}, 0")
    dma(0); bload(0, 0); dma(1); bload(1, 1)
    a.e("s_mov_b32 s60, 0")
    a.label("K2_LOOP")
    vm_at_loop = list(a.vm)
    for sub in range(3):
        slot = sub
        a.wait_vm([("T", slot), ("B", slot)])
        a.e("s_barrier")
        nslot = (sub + 2) % 3
        dma(nslot); bload(nslot, nslot)
        frags = []; info = []
        for ks in range(4):
            for nt in range(5):
                o0 = slot*SL + (16*ks)*320 + nt*64
                o1 = o0 + 4*320
                frags.append((o0, o1)); info.append((ks, nt))
        n = len(frags)
        def issue(i):
            buf = AB + (i % 8)*4
            a.lds(f"ds_read_b64_tr_b16 {vr(buf,2)}, v{vA} offset:{frags[i][0]}", ("F", i))
            a.lds(f"ds_read_b64_tr_b16 {vr(buf+2,2)}, v{vA} offset:{frags[i][1]}", ("F", i))
        for i in range(6): issue(i)
        for i in range(n):
            a.wait_lg(("F", i))
            ks, nt = info[i]
            a.e(f"v_mfma_f32_32x32x16_bf16 {vr(ACC+16*nt,16)}, {vr(AB+(i%8)*4,4)}, {vr(BB+slot*16+4*ks,4)}, {vr(ACC+16*nt,16)}")
            if i + 6 < n: issue(i + 6)
    assert a.vm == vm_at_loop, (a.vm, vm_at_loop)
    a.e("s_add_u32 s60, s60, 1")
    a.e("s_cmp_lt_u32 s60, 32")
    a.e("s_cbranch_scc1 K2_LOOP")
    a.wait_vm_all()
    a.nop(12)
    for nt in range(5):
        for u in range(2):
            for k in range(4):
                src = ACC + 16*nt + 8*u + 2*k
                a.e(f"v_cvt_pk_bf16_f32 v{BB+(nt*2+u)*4+k}, v{src}, v{src+1}")
    for nt in range(5):
        for u in range(2):
            a.vmem(f"buffer_store_dwordx4 {vr(BB+(nt*2+u)*4,4)}, v{vST}, s[{sOut}:{sOut+3}], 0 offen offset:{nt*64+u*32}", "ST")
    a.wait_vm_all()
    a.label("K2_END")
    a.e("s_endpgm")

HEADER = open("cdna_kernels/" + NAME + ".s.ref").read().split("; Override launch geometry")[0]

def kdesc(name, vgpr, sgpr=102):
    acc = (vgpr + 3)//4*4
    return f""".amdhsa_kernel {name}
  .amdhsa_next_free_vgpr {vgpr}
  .amdhsa_next_free_sgpr {sgpr}
  .amdhsa_accum_offset {acc}
  .amdhsa_group_segment_fixed_size 0
  .amdhsa_kernarg_size 104
  .amdhsa_user_sgpr_count 2
  .amdhsa_user_sgpr_kernarg_segment_ptr 1
  .amdhsa_system_sgpr_workgroup_id_x 1
.end_amdhsa_kernel
"""

def main(out):
    a = Asm()
    txt = HEADER
    txt += f"; @launch kernel={NAME}_k1_kernel grid=(1024,1,1) block=(256,1,1) lds={3*SLOT}\n"
    txt += f"; @launch kernel={NAME}_k2_kernel grid=(128,1,1) block=(256,1,1) lds={3*20480}\n"
    txt += '.amdgcn_target "amdgcn-amd-amdhsa--gfx950"\n.text\n'
    for kn, fn in ((NAME + "_k1_kernel", kernel1), (NAME + "_k2_kernel", kernel2)):
        a = Asm()
        fn(a)
        txt += f".globl {kn}\n.p2align 8\n.type {kn},@function\n" + a.text()
    txt += '.section .rodata,"a"\n.p2align 6\n'
    txt += kdesc(NAME + "_k1_kernel", 256)
    txt += ".p2align 6\n"
    txt += kdesc(NAME + "_k2_kernel", 256)
    open(out, "w").write(txt)

if __name__ == "__main__":
    main(sys.argv[1] if len(sys.argv) > 1 else "cdna_kernels/" + NAME + ".s")
```

```python
import sys, math, os
FLAGS = set(os.environ.get('GF', '').split(','))

NAME = "concat_heads__gqa_block_cached__gqa_block_cached__near_ridge"

class Asm:
    def __init__(self):
        self.lines = []
        self.vm = []
        self.lg = []
    def e(self, s):
        self.lines.append("    " + s)
    def label(self, s):
        self.lines.append(s + ":")
    def raw(self, s):
        self.lines.append(s)
    def c(self, s):
        self.lines.append("    ; " + s)
    def vmem(self, s, tag):
        self.e(s); self.vm.append(tag)
    def wait_vm(self, tags):
        if isinstance(tags, str) or isinstance(tags, tuple): tags = [tags]
        last = -1
        for i, t in enumerate(self.vm):
            if t in tags: last = i
        if last < 0: return
        n = len(self.vm) - 1 - last
        assert n <= 63
        self.e(f"s_waitcnt vmcnt({n})")
        self.vm = self.vm[last+1:]
    def wait_vm_all(self):
        self.e("s_waitcnt vmcnt(0)"); self.vm = []
    def lds(self, s, tag):
        self.e(s); self.lg.append(tag)
    def wait_lg(self, tag):
        last = -1
        for i, t in enumerate(self.lg):
            if t == tag: last = i
        if last < 0: return
        n = len(self.lg) - 1 - last
        assert n <= 15, n
        self.e(f"s_waitcnt lgkmcnt({n})")
        self.lg = self.lg[last+1:]
    def wait_lg_all(self):
        self.e("s_waitcnt lgkmcnt(0)"); self.lg = []
    def nop(self, n):
        while n > 0:
            k = min(n, 8)
            self.e(f"s_nop {k-1}")
            n -= k
    def text(self):
        return "\n".join(self.lines) + "\n"

def vr(a, n=1):
    return f"v{a}" if n == 1 else f"v[{a}:{a+n-1}]"
def sr(a, n=1):
    return f"s{a}" if n == 1 else f"s[{a}:{a+n-1}]"

SLOT = 24576
CSC = (192 ** -0.5) * math.log2(math.e)
import struct
def f32bits(x):
    return struct.unpack("<I", struct.pack("<f", x))[0]

XF_OFF = 64*1024*1024
def kernel0(a):
    a.label(NAME + "_k0_kernel")
    a.e("s_cmp_ge_u32 s2, 320")
    a.e("s_cbranch_scc1 K0_END")
    a.e("s_load_dwordx2 s[8:9], s[0:1], 0")
    a.e("s_load_dwordx2 s[10:11], s[0:1], 40")
    a.e("s_load_dwordx2 s[4:5], s[0:1], 96")
    a.e("s_mul_i32 s3, s2, 6554")
    a.e("s_lshr_b32 s3, s3, 16")
    a.e("s_mul_i32 s6, s3, 10")
    a.e("s_sub_u32 s6, s2, s6")
    a.e("s_lshr_b32 s7, s3, 4")
    a.e("s_and_b32 s12, s3, 15")
    a.e("v_lshrrev_b32 v1, 6, v0")
    a.e("v_and_b32 v2, 63, v0")
    a.e("v_and_b32 v3, 31, v0")
    a.e("v_bfe_u32 v4, v0, 5, 1")
    a.e("s_waitcnt lgkmcnt(0)")
    a.e("s_cmp_eq_u32 s7, 0")
    a.e("s_cselect_b32 s8, s8, s10")
    a.e("s_cselect_b32 s9, s9, s11")
    a.e("s_mul_i32 s13, s12, 163840")
    a.e("s_add_u32 s16, s8, s13")
    a.e("s_addc_u32 s17, s9, 0")
    a.e("s_mov_b32 s18, 163840")
    a.e("s_mov_b32 s19, 0x00020000")
    a.e("s_mul_i32 s13, s3, 163840")
    a.e(f"s_add_u32 s13, s13, {XF_OFF}")
    a.e("s_add_u32 s20, s4, s13")
    a.e("s_addc_u32 s21, s5, 0")
    a.e("s_mov_b32 s22, 163840")
    a.e("s_mov_b32 s23, 0x00020000")
    a.e("v_lshl_add_u32 v5, v1, 5, v3")
    a.e("v_mul_u32_u24 v5, 1280, v5")
    a.e("v_lshl_add_u32 v5, v4, 6, v5")
    a.e("s_lshl_b32 s14, s6, 7")
    a.e("v_mul_u32_u24 v6, 40960, v1")
    a.e("v_lshl_add_u32 v6, v2, 4, v6")
    a.e("s_lshl_b32 s15, s6, 12")
    for ks in range(4):
        a.e(f"buffer_load_dwordx4 v[{8+4*ks}:{11+4*ks}], v5, s[16:19], s14 offen offset:{ks*16}")
    for ks in range(4):
        a.e(f"s_waitcnt vmcnt({3})" if ks == 0 else "s_waitcnt vmcnt(3)")
        a.e(f"buffer_store_dwordx4 v[{8+4*ks}:{11+4*ks}], v6, s[20:23], s15 offen offset:{ks*1024}")
    a.e("s_waitcnt vmcnt(0)")
    a.label("K0_END")
    a.e("s_endpgm")

def kernel1(a):
    ACC = 0; QF = 96; S = 144; P = 176; AB = 192
    XB = 96
    vKa = 224
    vE, vO, vE2, vO2 = 228, 229, 230, 231
    vDK = 232
    vDV = 238
    vDW = 241
    vX = 244; vM = 245; vL = 246
    T0, T1, T2, T3, T4, T5 = 247, 248, 249, 250, 251, 252
    vWE, vWO = 253, 254
    vST = 255
    sK, sV, sW, sX, sO = 24, 28, 32, 36, 40
    sWv = 44
    sM0 = 45
    sC = 46
    sT = 47; sT2 = 48; sT3 = 49
    a.label(NAME + "_k1_kernel")
    PERS = 'pers' in FLAGS
    a.e(f"s_cmp_ge_u32 s2, {256 if PERS else 1024}")
    a.e("s_cbranch_scc1 K1_END")
    if PERS:
        a.e("v_mov_b32 v255, v0")
        a.e("s_mov_b32 s60, 0")
        a.label("K1_UNIT")
        a.e("v_mov_b32 v0, v255")
        a.e("s_barrier")
    a.e("s_load_dwordx8 s[8:15], s[0:1], 0")
    a.e("s_load_dwordx8 s[16:23], s[0:1], 40")
    a.e("s_load_dwordx2 s[4:5], s[0:1], 96")
    a.e("v_lshrrev_b32 v1, 6, v0")
    a.e("v_and_b32 v2, 63, v0")
    a.e("s_nop 0")
    a.e(f"v_readfirstlane_b32 s{sWv}, v1")
    a.e("s_lshr_b32 s3, s2, 9")
    a.e("s_and_b32 s6, s2, 511")
    a.e("s_and_b32 s7, s2, 31")
    a.e("s_lshr_b32 s50, s6, 5")
    a.e("s_waitcnt lgkmcnt(0)")
    a.e("s_cmp_eq_u32 s3, 0")
    for i in range(8):
        a.e(f"s_cselect_b32 s{8+i}, s{8+i}, s{16+i}")
    a.e(f"s_mul_i32 s{sT}, s6, 196608")
    a.e(f"s_add_u32 s{sK}, s10, s{sT}")
    a.e(f"s_addc_u32 s{sK+1}, s11, 0")
    a.e(f"s_mov_b32 s{sK+2}, 196608")
    a.e(f"s_mov_b32 s{sK+3}, 0x00020000")
    a.e(f"s_add_u32 s{sV}, s12, s{sT}")
    a.e(f"s_addc_u32 s{sV+1}, s13, 0")
    a.e(f"s_mov_b32 s{sV+2}, 196608")
    a.e(f"s_mov_b32 s{sV+3}, 0x00020000")
    a.e(f"s_mul_i32 s{sT}, s7, 384")
    a.e(f"s_add_u32 s{sW}, s14, s{sT}")
    a.e(f"s_addc_u32 s{sW+1}, s15, 0")
    a.e(f"s_sub_u32 s{sW+2}, {640*12288}, s{sT}")
    a.e(f"s_mov_b32 s{sW+3}, 0x00020000")
    a.e(f"s_lshr_b32 s{sT}, s2, 5")
    a.e(f"s_mul_i32 s{sT}, s{sT}, 163840")
    a.e(f"s_add_u32 s{sT}, s{sT}, {XF_OFF}")
    a.e(f"s_add_u32 s{sX}, s4, s{sT}")
    a.e(f"s_addc_u32 s{sX+1}, s5, 0")
    a.e(f"s_mov_b32 s{sX+2}, 163840")
    a.e(f"s_mov_b32 s{sX+3}, 0x00020000")
    a.e(f"s_mul_i32 s{sT}, s2, 49152")
    a.e(f"s_add_u32 s{sO}, s4, s{sT}")
    a.e(f"s_addc_u32 s{sO+1}, s5, 0")
    a.e(f"s_mov_b32 s{sO+2}, 49152")
    a.e(f"s_mov_b32 s{sO+3}, 0x00020000")
    a.e(f"s_mul_i32 s{sM0}, s{sWv}, 6144")
    a.e(f"s_mov_b32 s{sC}, 0x{f32bits(CSC):08x}")
    a.e(f"s_mul_i32 s{sT2}, s{sWv}, {16*12288}")
    for i in range(6):
        a.e(f"v_add_u32 v3, {64*i}, v2")
        a.e(f"v_mul_u32_u24 v4, 0xaab, v3")
        a.e(f"v_lshrrev_b32 v4, 16, v4")
        a.e(f"v_mul_u32_u24 v5, 24, v4")
        a.e(f"v_sub_u32 v5, v3, v5")
        a.e(f"v_bfe_u32 v6, v4, 1, 3")
        a.e(f"v_xor_b32 v6, v5, v6")
        a.e(f"v_lshlrev_b32 v6, 4, v6")
        a.e(f"v_mul_u32_u24 v7, 384, v4")
        a.e(f"v_add_u32 v6, v6, v7")
        a.e(f"v_add_u32 v6, s{sM0}, v6")
        if i % 3:
            a.e(f"v_subrev_u32 v{vDK+i}, {1024*(i%3)}, v6")
        else:
            a.e(f"v_mov_b32 v{vDK+i}, v6")
        if i < 3:
            a.e(f"v_bfe_u32 v6, v4, 1, 1")
            a.e(f"v_lshlrev_b32 v6, 2, v6")
            a.e(f"v_xor_b32 v6, v5, v6")
            a.e(f"v_lshlrev_b32 v6, 4, v6")
            a.e(f"v_add_u32 v8, v6, v7")
            a.e(f"v_add_u32 v8, s{sM0}, v8")
            if i: a.e(f"v_subrev_u32 v{vDV+i}, {1024*i}, v8")
            else: a.e(f"v_mov_b32 v{vDV+i}, v8")
            a.e(f"v_mul_u32_u24 v8, 12288, v4")
            a.e(f"v_add_u32 v8, v6, v8")
            a.e(f"v_add_u32 v8, s{sT2}, v8")
            if i: a.e(f"v_subrev_u32 v{vDW+i}, {1024*i}, v8")
            else: a.e(f"v_mov_b32 v{vDW+i}, v8")
    a.e("v_and_b32 v3, 31, v2")
    a.e("v_lshrrev_b32 v4, 5, v2")
    a.e("v_bfe_u32 v5, v3, 1, 3")
    a.e("v_mul_u32_u24 v6, 384, v3")
    for bi in range(4):
        a.e(f"v_add_u32 v7, {2*bi}, v4")
        a.e(f"v_xor_b32 v7, v7, v5")
        a.e(f"v_lshl_add_u32 v{vKa+bi}, v7, 4, v6")
    a.e("v_bfe_u32 v5, v2, 2, 2")
    a.e("v_and_b32 v6, 3, v2")
    a.e("v_and_b32 v7, 1, v6")
    a.e("v_lshlrev_b32 v7, 1, v7")
    a.e("v_lshrrev_b32 v6, 1, v6")
    a.e("v_or_b32 v6, v6, v7")
    a.e("v_lshlrev_b32 v6, 3, v6")
    a.e("v_bfe_u32 v7, v2, 4, 1")
    a.e("v_lshl_add_u32 v6, v7, 5, v6")
    a.e("v_bfe_u32 v7, v5, 1, 1")
    a.e("v_lshlrev_b32 v7, 6, v7")
    a.e("v_lshl_add_u32 v8, v4, 2, v5")
    a.e("v_mul_u32_u24 v8, 384, v8")
    a.e("v_add_u32 v8, v8, v6")
    a.e(f"v_add_u32 v{vE}, v8, v7")
    a.e(f"v_sub_u32 v{vO}, v8, v7")
    a.e(f"v_add_u32 v{vE2}, {2*SLOT}, v{vE}")
    a.e(f"v_add_u32 v{vO2}, {2*SLOT}, v{vO}")
    a.e("v_lshl_add_u32 v8, v4, 5, v5")
    a.e("v_mul_u32_u24 v8, 384, v8")
    a.e("v_add_u32 v8, v8, v6")
    a.e(f"v_add_u32 v{vWE}, v8, v7")
    a.e(f"v_sub_u32 v{vWO}, v8, v7")
    a.e(f"s_mul_i32 s{sT}, s{sWv}, 40960")
    a.e(f"v_lshlrev_b32 v8, 4, v2")
    a.e(f"v_add_u32 v{vX}, s{sT}, v8")
    a.e(f"s_mul_i32 s{sT}, s{sWv}, 12288")
    a.e(f"v_lshlrev_b32 v8, 4, v2")
    a.e(f"v_add_u32 v{vST}, s{sT}, v8")
    a.e(f"v_mov_b32 v{vM}, 0xff800000")
    a.e(f"v_mov_b32 v{vL}, 0")

    NT = 26
    def tile_kind(t):
        if t < 10: return ("W", t)
        t -= 10
        return ("K" if t % 2 == 0 else "V", t // 2)

    def dma(t):
        if t >= NT: return
        kind, idx = tile_kind(t)
        if kind == "W" and 'now' in FLAGS: return
        slot = t % 3
        for half in range(2):
            a.e(f"s_add_u32 m0, s{sM0}, {slot*SLOT + half*3072}")
            if kind == "W":
                a.e(f"s_mov_b32 s{sT3}, {idx*64*12288 + half*8*12288}")
            elif kind == "V":
                a.e(f"s_mov_b32 s{sT3}, {idx*SLOT + half*3072}")
            else:
                a.e(f"s_mov_b32 s{sT3}, {idx*SLOT}")
            for i in range(3):
                if kind == "W": vo, srd = vDW+i, sW
                elif kind == "V": vo, srd = vDV+i, sV
                else: vo, srd = vDK+half*3+i, sK
                off = f" offset:{1024*i}" if i else ""
                nt = " nt" if ('nt' in FLAGS and kind != "W") else ""
                a.vmem(f"buffer_load_dwordx4 v{vo}, s[{srd}:{srd+3}], s{sT3} offen{off}{nt} lds", ("T", t))
    def xload(ch):
        if ch >= 10 or 'nox' in FLAGS: return
        buf = XB + (ch % 3) * 16
        for ks in range(4):
            so = "0" if ch == 0 else f"s{sT3}"
            if ks == 0 and ch: a.e(f"s_mov_b32 s{sT3}, {ch*4096}")
            a.vmem(f"buffer_load_dwordx4 {vr(buf+4*ks,4)}, v{vX}, s[{sX}:{sX+3}], {so} offen offset:{ks*1024}", ("X", ch))

    DEPTH = int(os.environ.get('DEPTH', '2'))
    dma(0); xload(0); dma(1); xload(1)
    for tt in range(2, DEPTH): dma(tt)

    LOOK = 6
    def run_frags(frags, mfma_of):
        n = len(frags)
        if 'nocomp' in FLAGS: return
        def issue(i):
            buf = AB + (i % 8) * 4
            for k, ins in enumerate(frags[i]):
                a.lds(ins(buf), ("F", i))
        for i in range(min(LOOK, n)): issue(i)
        for i in range(n):
            a.wait_lg(("F", i))
            mfma_of(i, AB + (i % 8) * 4)
            if i + LOOK < n: issue(i + LOOK)

    for t in range(NT):
        kind, idx = tile_kind(t)
        slot = t % 3
        a.c(f"---- tile {t} {kind}{idx} slot {slot}")
        tags = [("T", t)]
        if kind == "W": tags.append(("X", idx))
        a.wait_vm(tags)
        a.e("s_barrier")
        dma(t + DEPTH)
        if kind == "W": xload(idx + 2)
        if kind == "W":
            frags = []; info = []
            xb = XB + (idx % 3) * 16
            for ks in range(4):
                for mt in range(6):
                    base = vWE if mt % 2 == 0 else vWO
                    o0 = slot*SLOT + (ks*8)*384 + mt*64
                    o1 = o0 + 4*384
                    frags.append([lambda d, base=base, o=o0: f"ds_read_b64_tr_b16 {vr(d,2)}, v{base} offset:{o}",
                                  lambda d, base=base, o=o1: f"ds_read_b64_tr_b16 {vr(d+2,2)}, v{base} offset:{o}"])
                    info.append((ks, mt))
            def mf(i, buf):
                ks, mt = info[i]
                cc = "0" if (idx == 0 and ks == 0) else vr(ACC+16*mt, 16)
                a.e(f"v_mfma_f32_32x32x16_bf16 {vr(ACC+16*mt,16)}, {vr(buf,4)}, {vr(xb+4*ks,4)}, {cc}")
            run_frags(frags, mf)
            if idx == 9:
                a.nop(12)
                for s in range(12):
                    for k in range(4):
                        src = ACC + 16*(s//2) + 8*(s%2) + 2*k
                        a.e(f"v_cvt_pk_bf16_f32 v{QF+4*s+k}, v{src}, v{src+1}")
        elif kind == "K":
            frags = []; info = []
            for s in range(12):
                for kt in range(2):
                    j0 = 2*s; aa = j0 // 8; bi = (j0 % 8)//2
                    o = slot*SLOT + kt*12288 + aa*128
                    frags.append([lambda d, bi=bi, o=o: f"ds_read_b128 {vr(d,4)}, v{vKa+bi} offset:{o}"])
                    info.append((s, kt))
            def mf(i, buf):
                s, kt = info[i]
                cc = "0" if s == 0 else vr(S+16*kt, 16)
                a.e(f"v_mfma_f32_32x32x16_bf16 {vr(S+16*kt,16)}, {vr(buf,4)}, {vr(QF+4*s,4)}, {cc}")
            run_frags(frags, mf)
            a.nop(12)
            if 'nosm' in FLAGS: continue
            a.e(f"v_max3_f32 v{T0}, v{S}, v{S+1}, v{S+2}")
            a.e(f"v_max3_f32 v{T1}, v{S+16}, v{S+17}, v{S+18}")
            for k in range(3, 15, 2):
                a.e(f"v_max3_f32 v{T0}, v{T0}, v{S+k}, v{S+k+1}")
                a.e(f"v_max3_f32 v{T1}, v{T1}, v{S+16+k}, v{S+16+k+1}")
            a.e(f"v_max3_f32 v{T0}, v{T0}, v{S+15}, v{S+31}")
            a.e(f"v_max3_f32 v{T0}, v{T0}, v{T1}, v{vM}")
            a.e(f"v_mov_b32 v{T1}, v{T0}")
            a.nop(2)
            a.e(f"v_permlane32_swap_b32 v{T0}, v{T1}")
            a.nop(2)
            a.e(f"v_max_f32 v{T0}, v{T0}, v{T1}")
            a.e(f"v_sub_f32 v{T2}, v{vM}, v{T0}")
            a.e(f"v_mul_f32 v{T2}, s{sC}, v{T2}")
            a.e(f"v_exp_f32 v{T2}, v{T2}")
            a.e(f"v_mov_b32 v{vM}, v{T0}")
            a.e(f"v_mul_f32 v{T3}, s{sC}, v{T0}")
            a.e(f"v_sub_f32 v{T3}, 0, v{T3}")
            for k in range(32):
                a.e(f"v_fma_f32 v{S+k}, v{S+k}, s{sC}, v{T3}")
            for k in range(32):
                a.e(f"v_exp_f32 v{S+k}, v{S+k}")
            a.e(f"v_mul_f32 v{vL}, v{vL}, v{T2}")
            a.e(f"v_add_f32 v{T0}, v{S}, v{S+1}")
            a.e(f"v_add_f32 v{T1}, v{S+2}, v{S+3}")
            for k in range(4, 32, 2):
                a.e(f"v_add_f32 v{T0}, v{T0}, v{S+k}")
                a.e(f"v_add_f32 v{T1}, v{T1}, v{S+k+1}")
            a.e(f"v_add_f32 v{T0}, v{T0}, v{T1}")
            a.e(f"v_add_f32 v{vL}, v{vL}, v{T0}")
            for k in range(16):
                a.e(f"v_cvt_pk_bf16_f32 v{P+k}, v{S+2*k}, v{S+2*k+1}")
            if idx > 0:
                for k in range(96):
                    a.e(f"v_mul_f32 v{ACC+k}, v{ACC+k}, v{T2}")
        else:
            frags = []; info = []
            for ks in range(4):
                for mt in range(6):
                    if slot == 2:
                        base = vE2 if mt % 2 == 0 else vO2; so = 0
                    else:
                        base = vE if mt % 2 == 0 else vO; so = slot*SLOT
                    o0 = so + (16*ks)*384 + mt*64
                    o1 = o0 + 8*384
                    frags.append([lambda d, base=base, o=o0: f"ds_read_b64_tr_b16 {vr(d,2)}, v{base} offset:{o}",
                                  lambda d, base=base, o=o1: f"ds_read_b64_tr_b16 {vr(d+2,2)}, v{base} offset:{o}"])
                    info.append((ks, mt))
            def mf(i, buf):
                ks, mt = info[i]
                cc = "0" if (idx == 0 and ks == 0) else vr(ACC+16*mt, 16)
                a.e(f"v_mfma_f32_32x32x16_bf16 {vr(ACC+16*mt,16)}, {vr(buf,4)}, {vr(P+4*ks,4)}, {cc}")
            run_frags(frags, mf)
    a.e(f"v_mov_b32 v{T1}, v{vL}")
    a.nop(2)
    a.e(f"v_permlane32_swap_b32 v{vL}, v{T1}")
    a.nop(2)
    a.e(f"v_add_f32 v{vL}, v{vL}, v{T1}")
    a.e(f"v_rcp_f32 v{T2}, v{vL}")
    a.nop(12)
    for k in range(96):
        a.e(f"v_mul_f32 v{ACC+k}, v{ACC+k}, v{T2}")
    for s in range(12):
        for k in range(4):
            src = ACC + 16*(s//2) + 8*(s%2) + 2*k
            a.e(f"v_cvt_pk_bf16_f32 v{QF+4*s+k}, v{src}, v{src+1}")
    for s in range(12):
        a.vmem(f"buffer_store_dwordx4 {vr(QF+4*s,4)}, v{vST}, s[{sO}:{sO+3}], 0 offen offset:{0 if False else (s*1024)%4096}" if s < 4 else
               f"buffer_store_dwordx4 {vr(QF+4*s,4)}, v{vST}, s[{sO}:{sO+3}], s{50+s//4-1} offen offset:{(s*1024)%4096}", "ST") if False else None
    a.e("s_mov_b32 s51, 4096")
    a.e("s_mov_b32 s52, 8192")
    for s in range(12):
        if 'nost' in FLAGS: break
        so = "0" if s < 4 else ("s51" if s < 8 else "s52")
        a.vmem(f"buffer_store_dwordx4 {vr(QF+4*s,4)}, v{vST}, s[{sO}:{sO+3}], {so} offen offset:{(s*1024)%4096}{os.environ.get('STF','')}", "ST")
    a.wait_vm_all()
    if PERS:
        a.e("s_add_u32 s2, s2, 256")
        a.e("s_lshl_b32 s61, s44, 6")
        a.e("v_mbcnt_lo_u32_b32 v255, -1, 0")
        a.e("v_mbcnt_hi_u32_b32 v255, -1, v255")
        a.e("v_add_u32 v255, s61, v255")
        a.e("s_add_u32 s60, s60, 1")
        a.e("s_cmp_lt_u32 s60, 4")
        a.e("s_cbranch_scc1 K1_UNIT")
    a.label("K1_END")
    a.e("s_endpgm")

def kernel2(a):
    ACC = 0
    AB = 96
    BB = 128
    vD = 180
    vA = 186
    vB = 187
    vST = 188
    sWo, sOw, sOut = 24, 28, 32
    sWv, sM0, sT, sT3 = 44, 45, 47, 49
    SL = 20480
    a.label(NAME + "_k2_kernel")
    a.e("s_cmp_ge_u32 s2, 128")
    a.e("s_cbranch_scc1 K2_END")
    a.e("s_load_dwordx2 s[8:9], s[0:1], 32")
    a.e("s_load_dwordx2 s[10:11], s[0:1], 72")
    a.e("s_load_dwordx2 s[12:13], s[0:1], 80")
    a.e("s_load_dwordx2 s[4:5], s[0:1], 96")
    a.e("v_lshrrev_b32 v1, 6, v0")
    a.e("v_and_b32 v2, 63, v0")
    a.e("s_nop 0")
    a.e(f"v_readfirstlane_b32 s{sWv}, v1")
    a.e("s_lshr_b32 s3, s2, 2")
    a.e("s_and_b32 s6, s2, 3")
    a.e("s_lshr_b32 s7, s3, 4")
    a.e("s_waitcnt lgkmcnt(0)")
    a.e("s_cmp_eq_u32 s7, 0")
    a.e("s_cselect_b32 s8, s8, s10")
    a.e("s_cselect_b32 s9, s9, s11")
    a.e(f"s_mul_i32 s{sT}, s6, 320")
    a.e(f"s_add_u32 s{sWo}, s8, s{sT}")
    a.e(f"s_addc_u32 s{sWo+1}, s9, 0")
    a.e(f"s_sub_u32 s{sWo+2}, {6144*1280}, s{sT}")
    a.e(f"s_mov_b32 s{sWo+3}, 0x00020000")
    a.e(f"s_mul_i32 s{sT}, s3, {32*49152}")
    a.e(f"s_add_u32 s{sOw}, s4, s{sT}")
    a.e(f"s_addc_u32 s{sOw+1}, s5, 0")
    a.e(f"s_mov_b32 s{sOw+2}, {32*49152}")
    a.e(f"s_mov_b32 s{sOw+3}, 0x00020000")
    a.e("s_and_b32 s50, s3, 15")
    a.e(f"s_mul_i32 s{sT}, s50, {128*2560}")
    a.e(f"s_mul_i32 s51, s7, 1280")
    a.e(f"s_add_u32 s{sT}, s{sT}, s51")
    a.e(f"s_mul_i32 s51, s6, 320")
    a.e(f"s_add_u32 s{sT}, s{sT}, s51")
    a.e(f"s_add_u32 s{sOut}, s12, s{sT}")
    a.e(f"s_addc_u32 s{sOut+1}, s13, 0")
    a.e(f"s_sub_u32 s{sOut+2}, {16*128*2560}, s{sT}")
    a.e(f"s_mov_b32 s{sOut+3}, 0x00020000")
    a.e(f"s_mul_i32 s{sM0}, s{sWv}, 5120")
    a.e(f"s_mul_i32 s{sT}, s{sWv}, {16*1280}")
    for i in range(5):
        a.e(f"v_add_u32 v3, {64*i}, v2")
        a.e(f"v_mul_u32_u24 v4, 3277, v3")
        a.e(f"v_lshrrev_b32 v4, 16, v4")
        a.e(f"v_mul_u32_u24 v5, 20, v4")
        a.e(f"v_sub_u32 v5, v3, v5")
        a.e(f"v_mul_u32_u24 v6, 1280, v4")
        a.e(f"v_lshl_add_u32 v6, v5, 4, v6")
        a.e(f"v_add_u32 v6, s{sT}, v6")
        if i in (1, 2, 3):
            a.e(f"v_subrev_u32 v{vD+i}, {1024*i}, v6")
        else:
            a.e(f"v_mov_b32 v{vD+i}, v6")
    a.e("v_lshrrev_b32 v4, 5, v2")
    a.e("v_bfe_u32 v5, v2, 2, 2")
    a.e("v_and_b32 v6, 3, v2")
    a.e("v_and_b32 v7, 1, v6")
    a.e("v_lshlrev_b32 v7, 1, v7")
    a.e("v_lshrrev_b32 v6, 1, v6")
    a.e("v_or_b32 v6, v6, v7")
    a.e("v_lshlrev_b32 v6, 3, v6")
    a.e("v_bfe_u32 v7, v2, 4, 1")
    a.e("v_lshl_add_u32 v6, v7, 5, v6")
    a.e("v_lshl_add_u32 v8, v4, 3, v5")
    a.e("v_mul_u32_u24 v8, 320, v8")
    a.e(f"v_add_u32 v{vA}, v8, v6")
    a.e(f"s_mul_i32 s{sT}, s{sWv}, 12288")
    a.e(f"v_lshlrev_b32 v8, 4, v2")
    a.e(f"v_add_u32 v{vB}, s{sT}, v8")
    a.e("v_and_b32 v3, 31, v2")
    a.e(f"s_lshl_b32 s{sT}, s{sWv}, 5")
    a.e(f"v_add_u32 v8, s{sT}, v3")
    a.e(f"v_mul_u32_u24 v8, 2560, v8")
    a.e(f"v_lshl_add_u32 v{vST}, v4, 4, v8")
    def dma(slot):
        a.e(f"s_add_u32 m0, s{sM0}, {slot*SL}")
        a.e("s_nop 0")
        for i in range(4):
            off = f" offset:{1024*i}" if i else ""
            a.vmem(f"buffer_load_dwordx4 v{vD+i}, s[{sWo}:{sWo+3}], s61 offen{off} lds", ("T", slot))
        a.e(f"s_add_u32 m0, s{sM0}, {slot*SL+4096}")
        a.e("s_nop 0")
        a.vmem(f"buffer_load_dwordx4 v{vD+4}, s[{sWo}:{sWo+3}], s61 offen lds", ("T", slot))
        a.e(f"s_add_u32 s61, s61, {64*1280}")
    def bload(slot, sub):
        for ks in range(4):
            off = f" offset:{1024*ks}" if ks else ""
            a.vmem(f"buffer_load_dwordx4 {vr(BB+slot*16+4*ks,4)}, v{vB}, s[{sOw}:{sOw+3}], s62 offen{off}", ("B", slot))
        a.e(f"s_add_u32 s62, s62, {4096 if sub < 2 else 49152-8192}")
    a.e("s_mov_b32 s61, 0")
    a.e("s_mov_b32 s62, 0")
    for k in range(5):
        a.e(f"v_mov_b32 v{250+k}, 0")
    for k in range(80):
        a.e(f"v_mov_b32 v{ACC+k}, 0")
    dma(0); bload(0, 0); dma(1); bload(1, 1)
    a.e("s_mov_b32 s60, 0")
    a.label("K2_LOOP")
    vm_at_loop = list(a.vm)
    for sub in range(3):
        slot = sub
        a.wait_vm([("T", slot), ("B", slot)])
        a.e("s_barrier")
        nslot = (sub + 2) % 3
        dma(nslot); bload(nslot, nslot)
        frags = []; info = []
        for ks in range(4):
            for nt in range(5):
                o0 = slot*SL + (16*ks)*320 + nt*64
                o1 = o0 + 4*320
                frags.append((o0, o1)); info.append((ks, nt))
        n = len(frags)
        def issue(i):
            buf = AB + (i % 8)*4
            a.lds(f"ds_read_b64_tr_b16 {vr(buf,2)}, v{vA} offset:{frags[i][0]}", ("F", i))
            a.lds(f"ds_read_b64_tr_b16 {vr(buf+2,2)}, v{vA} offset:{frags[i][1]}", ("F", i))
        for i in range(6): issue(i)
        for i in range(n):
            a.wait_lg(("F", i))
            ks, nt = info[i]
            a.e(f"v_mfma_f32_32x32x16_bf16 {vr(ACC+16*nt,16)}, {vr(AB+(i%8)*4,4)}, {vr(BB+slot*16+4*ks,4)}, {vr(ACC+16*nt,16)}")
            if i + 6 < n: issue(i + 6)
    assert a.vm == vm_at_loop, (a.vm, vm_at_loop)
    a.e("s_add_u32 s60, s60, 1")
    a.e("s_cmp_lt_u32 s60, 32")
    a.e("s_cbranch_scc1 K2_LOOP")
    a.wait_vm_all()
    a.nop(12)
    for nt in range(5):
        for u in range(2):
            for k in range(4):
                src = ACC + 16*nt + 8*u + 2*k
                a.e(f"v_cvt_pk_bf16_f32 v{BB+(nt*2+u)*4+k}, v{src}, v{src+1}")
    for nt in range(5):
        for u in range(2):
            a.vmem(f"buffer_store_dwordx4 {vr(BB+(nt*2+u)*4,4)}, v{vST}, s[{sOut}:{sOut+3}], 0 offen offset:{nt*64+u*32}", "ST")
    a.wait_vm_all()
    a.label("K2_END")
    a.e("s_endpgm")

HEADER = open("cdna_kernels/" + NAME + ".s.ref").read().split("; Override launch geometry")[0]

def kdesc(name, vgpr, sgpr=102):
    acc = (vgpr + 3)//4*4
    return f""".amdhsa_kernel {name}
  .amdhsa_next_free_vgpr {vgpr}
  .amdhsa_next_free_sgpr {sgpr}
  .amdhsa_accum_offset {acc}
  .amdhsa_group_segment_fixed_size 0
  .amdhsa_kernarg_size 104
  .amdhsa_user_sgpr_count 2
  .amdhsa_user_sgpr_kernarg_segment_ptr 1
  .amdhsa_system_sgpr_workgroup_id_x 1
.end_amdhsa_kernel
"""

def main(out):
    a = Asm()
    txt = HEADER
    txt += f"; @launch kernel={NAME}_k0_kernel grid=(320,1,1) block=(256,1,1) lds=0\n"
    txt += f"; @launch kernel={NAME}_k1_kernel grid=({256 if 'pers' in FLAGS else 1024},1,1) block=(256,1,1) lds={100*1024 if 'pers' in FLAGS else 3*SLOT}\n"
    txt += f"; @launch kernel={NAME}_k2_kernel grid=(128,1,1) block=(256,1,1) lds={3*20480}\n"
    txt += '.amdgcn_target "amdgcn-amd-amdhsa--gfx950"\n.text\n'
    for kn, fn in ((NAME + "_k0_kernel", kernel0), (NAME + "_k1_kernel", kernel1), (NAME + "_k2_kernel", kernel2)):
        a = Asm()
        fn(a)
        txt += f".globl {kn}\n.p2align 8\n.type {kn},@function\n" + a.text()
    txt += '.section .rodata,"a"\n.p2align 6\n'
    txt += kdesc(NAME + "_k0_kernel", 32)
    txt += ".p2align 6\n"
    txt += kdesc(NAME + "_k1_kernel", 256)
    txt += ".p2align 6\n"
    txt += kdesc(NAME + "_k2_kernel", 256)
    open(out, "w").write(txt)

if __name__ == "__main__":
    main(sys.argv[1] if len(sys.argv) > 1 else "cdna_kernels/" + NAME + ".s")
```

```python
import sys, math, os
FLAGS = set(os.environ.get('GF', '').split(','))

NAME = "concat_heads__gqa_block_cached__gqa_block_cached__near_ridge"

class Asm:
    def __init__(self):
        self.lines = []
        self.vm = []
        self.lg = []
    def e(self, s):
        self.lines.append("    " + s)
    def label(self, s):
        self.lines.append(s + ":")
    def raw(self, s):
        self.lines.append(s)
    def c(self, s):
        self.lines.append("    ; " + s)
    def vmem(self, s, tag):
        self.e(s); self.vm.append(tag)
    def wait_vm(self, tags):
        if isinstance(tags, str) or isinstance(tags, tuple): tags = [tags]
        last = -1
        for i, t in enumerate(self.vm):
            if t in tags: last = i
        if last < 0: return
        n = len(self.vm) - 1 - last
        assert n <= 63
        self.e(f"s_waitcnt vmcnt({n})")
        self.vm = self.vm[last+1:]
    def wait_vm_all(self):
        self.e("s_waitcnt vmcnt(0)"); self.vm = []
    def lds(self, s, tag):
        self.e(s); self.lg.append(tag)
    def wait_lg(self, tag):
        last = -1
        for i, t in enumerate(self.lg):
            if t == tag: last = i
        if last < 0: return
        n = len(self.lg) - 1 - last
        assert n <= 15, n
        self.e(f"s_waitcnt lgkmcnt({n})")
        self.lg = self.lg[last+1:]
    def wait_lg_all(self):
        self.e("s_waitcnt lgkmcnt(0)"); self.lg = []
    def nop(self, n):
        while n > 0:
            k = min(n, 8)
            self.e(f"s_nop {k-1}")
            n -= k
    def text(self):
        return "\n".join(self.lines) + "\n"

def vr(a, n=1):
    return f"v{a}" if n == 1 else f"v[{a}:{a+n-1}]"
def sr(a, n=1):
    return f"s{a}" if n == 1 else f"s[{a}:{a+n-1}]"

SLOT = 24576
CSC = (192 ** -0.5) * math.log2(math.e)
import struct
def f32bits(x):
    return struct.unpack("<I", struct.pack("<f", x))[0]

XF_OFF = 64*1024*1024
def kernel0(a):
    a.label(NAME + "_k0_kernel")
    a.e("s_cmp_ge_u32 s2, 320")
    a.e("s_cbranch_scc1 K0_END")
    a.e("s_load_dwordx2 s[8:9], s[0:1], 0")
    a.e("s_load_dwordx2 s[10:11], s[0:1], 40")
    a.e("s_load_dwordx2 s[4:5], s[0:1], 96")
    a.e("s_mul_i32 s3, s2, 6554")
    a.e("s_lshr_b32 s3, s3, 16")
    a.e("s_mul_i32 s6, s3, 10")
    a.e("s_sub_u32 s6, s2, s6")
    a.e("s_lshr_b32 s7, s3, 4")
    a.e("s_and_b32 s12, s3, 15")
    a.e("v_lshrrev_b32 v1, 6, v0")
    a.e("v_and_b32 v2, 63, v0")
    a.e("v_and_b32 v3, 31, v0")
    a.e("v_bfe_u32 v4, v0, 5, 1")
    a.e("s_waitcnt lgkmcnt(0)")
    a.e("s_cmp_eq_u32 s7, 0")
    a.e("s_cselect_b32 s8, s8, s10")
    a.e("s_cselect_b32 s9, s9, s11")
    a.e("s_mul_i32 s13, s12, 163840")
    a.e("s_add_u32 s16, s8, s13")
    a.e("s_addc_u32 s17, s9, 0")
    a.e("s_mov_b32 s18, 163840")
    a.e("s_mov_b32 s19, 0x00020000")
    a.e("s_mul_i32 s13, s3, 163840")
    a.e(f"s_add_u32 s13, s13, {XF_OFF}")
    a.e("s_add_u32 s20, s4, s13")
    a.e("s_addc_u32 s21, s5, 0")
    a.e("s_mov_b32 s22, 163840")
    a.e("s_mov_b32 s23, 0x00020000")
    a.e("v_lshl_add_u32 v5, v1, 5, v3")
    a.e("v_mul_u32_u24 v5, 1280, v5")
    a.e("v_lshl_add_u32 v5, v4, 6, v5")
    a.e("s_lshl_b32 s14, s6, 7")
    a.e("v_mul_u32_u24 v6, 40960, v1")
    a.e("v_lshl_add_u32 v6, v2, 4, v6")
    a.e("s_lshl_b32 s15, s6, 12")
    for ks in range(4):
        a.e(f"buffer_load_dwordx4 v[{8+4*ks}:{11+4*ks}], v5, s[16:19], s14 offen offset:{ks*16}")
    for ks in range(4):
        a.e(f"s_waitcnt vmcnt({3})" if ks == 0 else "s_waitcnt vmcnt(3)")
        a.e(f"buffer_store_dwordx4 v[{8+4*ks}:{11+4*ks}], v6, s[20:23], s15 offen offset:{ks*1024}")
    a.e("s_waitcnt vmcnt(0)")
    a.label("K0_END")
    a.e("s_endpgm")

def kernel1(a):
    ACC = 0; QF = 96; S = 144; P = 176; AB = 192
    XB = 96
    vKa = 224
    vE, vO, vE2, vO2 = 228, 229, 230, 231
    vDK = 232
    vDV = 238
    vDW = 241
    vX = 244; vM = 245; vL = 246
    T0, T1, T2, T3, T4, T5 = 247, 248, 249, 250, 251, 252
    vWE, vWO = 253, 254
    vST = 255
    sK, sV, sW, sX, sO = 24, 28, 32, 36, 40
    sWv = 44
    sM0 = 45
    sC = 46
    sT = 47; sT2 = 48; sT3 = 49
    a.label(NAME + "_k1_kernel")
    PERS = 'pers' in FLAGS
    a.e(f"s_cmp_ge_u32 s2, {256 if PERS else 1024}")
    a.e("s_cbranch_scc1 K1_END")
    if PERS:
        a.e("v_mov_b32 v255, v0")
        a.e("s_mov_b32 s60, 0")
        a.label("K1_UNIT")
        a.e("v_mov_b32 v0, v255")
        a.e("s_barrier")
    if 'stamp1' in FLAGS:
        a.e("s_memtime s[70:71]")
        a.e("s_memrealtime s[72:73]")
    a.e("s_load_dwordx8 s[8:15], s[0:1], 0")
    a.e("s_load_dwordx8 s[16:23], s[0:1], 40")
    a.e("s_load_dwordx2 s[4:5], s[0:1], 96")
    a.e("v_lshrrev_b32 v1, 6, v0")
    a.e("v_and_b32 v2, 63, v0")
    a.e("s_nop 0")
    a.e(f"v_readfirstlane_b32 s{sWv}, v1")
    a.e("s_lshr_b32 s3, s2, 9")
    a.e("s_and_b32 s6, s2, 511")
    a.e("s_and_b32 s7, s2, 31")
    a.e("s_lshr_b32 s50, s6, 5")
    a.e("s_waitcnt lgkmcnt(0)")
    a.e("s_cmp_eq_u32 s3, 0")
    for i in range(8):
        a.e(f"s_cselect_b32 s{8+i}, s{8+i}, s{16+i}")
    a.e(f"s_mul_i32 s{sT}, s6, 196608")
    a.e(f"s_add_u32 s{sK}, s10, s{sT}")
    a.e(f"s_addc_u32 s{sK+1}, s11, 0")
    a.e(f"s_mov_b32 s{sK+2}, 196608")
    a.e(f"s_mov_b32 s{sK+3}, 0x00020000")
    a.e(f"s_add_u32 s{sV}, s12, s{sT}")
    a.e(f"s_addc_u32 s{sV+1}, s13, 0")
    a.e(f"s_mov_b32 s{sV+2}, 196608")
    a.e(f"s_mov_b32 s{sV+3}, 0x00020000")
    a.e(f"s_mul_i32 s{sT}, s7, 384")
    a.e(f"s_add_u32 s{sW}, s14, s{sT}")
    a.e(f"s_addc_u32 s{sW+1}, s15, 0")
    a.e(f"s_sub_u32 s{sW+2}, {640*12288}, s{sT}")
    a.e(f"s_mov_b32 s{sW+3}, 0x00020000")
    a.e(f"s_lshr_b32 s{sT}, s2, 5")
    a.e(f"s_mul_i32 s{sT}, s{sT}, 163840")
    a.e(f"s_add_u32 s{sT}, s{sT}, {XF_OFF}")
    a.e(f"s_add_u32 s{sX}, s4, s{sT}")
    a.e(f"s_addc_u32 s{sX+1}, s5, 0")
    a.e(f"s_mov_b32 s{sX+2}, 163840")
    a.e(f"s_mov_b32 s{sX+3}, 0x00020000")
    a.e(f"s_mul_i32 s{sT}, s2, 49152")
    a.e(f"s_add_u32 s{sO}, s4, s{sT}")
    a.e(f"s_addc_u32 s{sO+1}, s5, 0")
    a.e(f"s_mov_b32 s{sO+2}, 49152")
    a.e(f"s_mov_b32 s{sO+3}, 0x00020000")
    a.e(f"s_mul_i32 s{sM0}, s{sWv}, 6144")
    a.e(f"s_mov_b32 s{sC}, 0x{f32bits(CSC):08x}")
    a.e(f"s_mul_i32 s{sT2}, s{sWv}, {16*12288}")
    for i in range(6):
        a.e(f"v_add_u32 v3, {64*i}, v2")
        a.e(f"v_mul_u32_u24 v4, 0xaab, v3")
        a.e(f"v_lshrrev_b32 v4, 16, v4")
        a.e(f"v_mul_u32_u24 v5, 24, v4")
        a.e(f"v_sub_u32 v5, v3, v5")
        a.e(f"v_bfe_u32 v6, v4, 1, 3")
        a.e(f"v_xor_b32 v6, v5, v6")
        a.e(f"v_lshlrev_b32 v6, 4, v6")
        a.e(f"v_mul_u32_u24 v7, 384, v4")
        a.e(f"v_add_u32 v6, v6, v7")
        a.e(f"v_add_u32 v6, s{sM0}, v6")
        if i % 3:
            a.e(f"v_subrev_u32 v{vDK+i}, {1024*(i%3)}, v6")
        else:
            a.e(f"v_mov_b32 v{vDK+i}, v6")
        if i < 3:
            a.e(f"v_bfe_u32 v6, v4, 1, 1")
            a.e(f"v_lshlrev_b32 v6, 2, v6")
            a.e(f"v_xor_b32 v6, v5, v6")
            a.e(f"v_lshlrev_b32 v6, 4, v6")
            a.e(f"v_add_u32 v8, v6, v7")
            a.e(f"v_add_u32 v8, s{sM0}, v8")
            if i: a.e(f"v_subrev_u32 v{vDV+i}, {1024*i}, v8")
            else: a.e(f"v_mov_b32 v{vDV+i}, v8")
            a.e(f"v_mul_u32_u24 v8, 12288, v4")
            a.e(f"v_add_u32 v8, v6, v8")
            a.e(f"v_add_u32 v8, s{sT2}, v8")
            if i: a.e(f"v_subrev_u32 v{vDW+i}, {1024*i}, v8")
            else: a.e(f"v_mov_b32 v{vDW+i}, v8")
    a.e("v_and_b32 v3, 31, v2")
    a.e("v_lshrrev_b32 v4, 5, v2")
    a.e("v_bfe_u32 v5, v3, 1, 3")
    a.e("v_mul_u32_u24 v6, 384, v3")
    for bi in range(4):
        a.e(f"v_add_u32 v7, {2*bi}, v4")
        a.e(f"v_xor_b32 v7, v7, v5")
        a.e(f"v_lshl_add_u32 v{vKa+bi}, v7, 4, v6")
    a.e("v_bfe_u32 v5, v2, 2, 2")
    a.e("v_and_b32 v6, 3, v2")
    a.e("v_and_b32 v7, 1, v6")
    a.e("v_lshlrev_b32 v7, 1, v7")
    a.e("v_lshrrev_b32 v6, 1, v6")
    a.e("v_or_b32 v6, v6, v7")
    a.e("v_lshlrev_b32 v6, 3, v6")
    a.e("v_bfe_u32 v7, v2, 4, 1")
    a.e("v_lshl_add_u32 v6, v7, 5, v6")
    a.e("v_bfe_u32 v7, v5, 1, 1")
    a.e("v_lshlrev_b32 v7, 6, v7")
    a.e("v_lshl_add_u32 v8, v4, 2, v5")
    a.e("v_mul_u32_u24 v8, 384, v8")
    a.e("v_add_u32 v8, v8, v6")
    a.e(f"v_add_u32 v{vE}, v8, v7")
    a.e(f"v_sub_u32 v{vO}, v8, v7")
    a.e(f"v_add_u32 v{vE2}, {2*SLOT}, v{vE}")
    a.e(f"v_add_u32 v{vO2}, {2*SLOT}, v{vO}")
    a.e("v_lshl_add_u32 v8, v4, 5, v5")
    a.e("v_mul_u32_u24 v8, 384, v8")
    a.e("v_add_u32 v8, v8, v6")
    a.e(f"v_add_u32 v{vWE}, v8, v7")
    a.e(f"v_sub_u32 v{vWO}, v8, v7")
    a.e(f"s_mul_i32 s{sT}, s{sWv}, 40960")
    a.e(f"v_lshlrev_b32 v8, 4, v2")
    a.e(f"v_add_u32 v{vX}, s{sT}, v8")
    a.e(f"s_mul_i32 s{sT}, s{sWv}, 12288")
    a.e(f"v_lshlrev_b32 v8, 4, v2")
    a.e(f"v_add_u32 v{vST}, s{sT}, v8")
    a.e(f"v_mov_b32 v{vM}, 0xff800000")
    a.e(f"v_mov_b32 v{vL}, 0")

    NT = 26
    def tile_kind(t):
        if t < 10: return ("W", t)
        t -= 10
        return ("K" if t % 2 == 0 else "V", t // 2)

    def dma(t):
        if t >= NT: return
        kind, idx = tile_kind(t)
        if kind == "W" and 'now' in FLAGS: return
        if kind != "W" and 'nokv' in FLAGS and idx > 1: return
        if kind == "K" and 'nok' in FLAGS and idx > 1: return
        slot = t % 3
        for half in range(2):
            a.e(f"s_add_u32 m0, s{sM0}, {slot*SLOT + half*3072}")
            if kind == "W":
                a.e(f"s_mov_b32 s{sT3}, {idx*64*12288 + half*8*12288}")
            elif kind == "V":
                a.e(f"s_mov_b32 s{sT3}, {idx*SLOT + half*3072}")
            else:
                a.e(f"s_mov_b32 s{sT3}, {idx*SLOT}")
            for i in range(3):
                if kind == "W": vo, srd = vDW+i, sW
                elif kind == "V": vo, srd = vDV+i, sV
                else: vo, srd = vDK+half*3+i, sK
                off = f" offset:{1024*i}" if i else ""
                nt = " nt" if ('nt' in FLAGS and kind != "W") else ""
                a.vmem(f"buffer_load_dwordx4 v{vo}, s[{srd}:{srd+3}], s{sT3} offen{off}{nt} lds", ("T", t))
    def xload(ch):
        if ch >= 10 or 'nox' in FLAGS: return
        buf = XB + (ch % 3) * 16
        for ks in range(4):
            so = "0" if ch == 0 else f"s{sT3}"
            if ks == 0 and ch: a.e(f"s_mov_b32 s{sT3}, {ch*4096}")
            a.vmem(f"buffer_load_dwordx4 {vr(buf+4*ks,4)}, v{vX}, s[{sX}:{sX+3}], {so} offen offset:{ks*1024}", ("X", ch))

    DEPTH = int(os.environ.get('DEPTH', '2'))
    dma(0); xload(0); dma(1); xload(1)
    for tt in range(2, DEPTH): dma(tt)

    LOOK = 6
    def run_frags(frags, mfma_of):
        n = len(frags)
        if 'nocomp' in FLAGS: return
        def issue(i):
            buf = AB + (i % 8) * 4
            if 'nolds' in FLAGS: return
            for k, ins in enumerate(frags[i]):
                a.lds(ins(buf), ("F", i))
        for i in range(min(LOOK, n)): issue(i)
        for i in range(n):
            a.wait_lg(("F", i))
            if 'nomfma' not in FLAGS: mfma_of(i, AB + (i % 8) * 4)
            if i + LOOK < n: issue(i + LOOK)

    for t in range(NT):
        kind, idx = tile_kind(t)
        slot = t % 3
        a.c(f"---- tile {t} {kind}{idx} slot {slot}")
        tags = [("T", t)]
        if kind == "W": tags.append(("X", idx))
        a.wait_vm(tags)
        a.e("s_barrier")
        dma(t + DEPTH)
        if kind == "W": xload(idx + 2)
        if kind == "W":
            frags = []; info = []
            xb = XB + (idx % 3) * 16
            for ks in range(4):
                for mt in range(6):
                    base = vWE if mt % 2 == 0 else vWO
                    o0 = slot*SLOT + (ks*8)*384 + mt*64
                    o1 = o0 + 4*384
                    frags.append([lambda d, base=base, o=o0: f"ds_read_b64_tr_b16 {vr(d,2)}, v{base} offset:{o}",
                                  lambda d, base=base, o=o1: f"ds_read_b64_tr_b16 {vr(d+2,2)}, v{base} offset:{o}"])
                    info.append((ks, mt))
            def mf(i, buf):
                ks, mt = info[i]
                cc = "0" if (idx == 0 and ks == 0) else vr(ACC+16*mt, 16)
                a.e(f"v_mfma_f32_32x32x16_bf16 {vr(ACC+16*mt,16)}, {vr(buf,4)}, {vr(xb+4*ks,4)}, {cc}")
            run_frags(frags, mf)
            if idx == 9:
                a.nop(12)
                for s in range(12):
                    for k in range(4):
                        src = ACC + 16*(s//2) + 8*(s%2) + 2*k
                        a.e(f"v_cvt_pk_bf16_f32 v{QF+4*s+k}, v{src}, v{src+1}")
        elif kind == "K":
            frags = []; info = []
            for s in range(12):
                for kt in range(2):
                    j0 = 2*s; aa = j0 // 8; bi = (j0 % 8)//2
                    o = slot*SLOT + kt*12288 + aa*128
                    frags.append([lambda d, bi=bi, o=o: f"ds_read_b128 {vr(d,4)}, v{vKa+bi} offset:{o}"])
                    info.append((s, kt))
            def mf(i, buf):
                s, kt = info[i]
                cc = "0" if s == 0 else vr(S+16*kt, 16)
                a.e(f"v_mfma_f32_32x32x16_bf16 {vr(S+16*kt,16)}, {vr(buf,4)}, {vr(QF+4*s,4)}, {cc}")
            run_frags(frags, mf)
            a.nop(12)
            if 'nosm' in FLAGS: continue
            a.e(f"v_max3_f32 v{T0}, v{S}, v{S+1}, v{S+2}")
            a.e(f"v_max3_f32 v{T1}, v{S+16}, v{S+17}, v{S+18}")
            for k in range(3, 15, 2):
                a.e(f"v_max3_f32 v{T0}, v{T0}, v{S+k}, v{S+k+1}")
                a.e(f"v_max3_f32 v{T1}, v{T1}, v{S+16+k}, v{S+16+k+1}")
            a.e(f"v_max3_f32 v{T0}, v{T0}, v{S+15}, v{S+31}")
            a.e(f"v_max3_f32 v{T0}, v{T0}, v{T1}, v{vM}")
            a.e(f"v_mov_b32 v{T1}, v{T0}")
            a.nop(2)
            a.e(f"v_permlane32_swap_b32 v{T0}, v{T1}")
            a.nop(2)
            a.e(f"v_max_f32 v{T0}, v{T0}, v{T1}")
            a.e(f"v_sub_f32 v{T2}, v{vM}, v{T0}")
            a.e(f"v_mul_f32 v{T2}, s{sC}, v{T2}")
            a.e(f"v_exp_f32 v{T2}, v{T2}")
            a.e(f"v_mov_b32 v{vM}, v{T0}")
            a.e(f"v_mul_f32 v{T3}, s{sC}, v{T0}")
            a.e(f"v_sub_f32 v{T3}, 0, v{T3}")
            for k in range(32):
                a.e(f"v_fma_f32 v{S+k}, v{S+k}, s{sC}, v{T3}")
            for k in range(32):
                a.e(f"v_exp_f32 v{S+k}, v{S+k}")
            a.e(f"v_mul_f32 v{vL}, v{vL}, v{T2}")
            a.e(f"v_add_f32 v{T0}, v{S}, v{S+1}")
            a.e(f"v_add_f32 v{T1}, v{S+2}, v{S+3}")
            for k in range(4, 32, 2):
                a.e(f"v_add_f32 v{T0}, v{T0}, v{S+k}")
                a.e(f"v_add_f32 v{T1}, v{T1}, v{S+k+1}")
            a.e(f"v_add_f32 v{T0}, v{T0}, v{T1}")
            a.e(f"v_add_f32 v{vL}, v{vL}, v{T0}")
            for k in range(16):
                a.e(f"v_cvt_pk_bf16_f32 v{P+k}, v{S+2*k}, v{S+2*k+1}")
            if idx > 0:
                for k in range(96):
                    a.e(f"v_mul_f32 v{ACC+k}, v{ACC+k}, v{T2}")
        else:
            frags = []; info = []
            for ks in range(4):
                for mt in range(6):
                    if slot == 2:
                        base = vE2 if mt % 2 == 0 else vO2; so = 0
                    else:
                        base = vE if mt % 2 == 0 else vO; so = slot*SLOT
                    o0 = so + (16*ks)*384 + mt*64
                    o1 = o0 + 8*384
                    frags.append([lambda d, base=base, o=o0: f"ds_read_b64_tr_b16 {vr(d,2)}, v{base} offset:{o}",
                                  lambda d, base=base, o=o1: f"ds_read_b64_tr_b16 {vr(d+2,2)}, v{base} offset:{o}"])
                    info.append((ks, mt))
            def mf(i, buf):
                ks, mt = info[i]
                cc = "0" if (idx == 0 and ks == 0) else vr(ACC+16*mt, 16)
                a.e(f"v_mfma_f32_32x32x16_bf16 {vr(ACC+16*mt,16)}, {vr(buf,4)}, {vr(P+4*ks,4)}, {cc}")
            run_frags(frags, mf)
    a.e(f"v_mov_b32 v{T1}, v{vL}")
    a.nop(2)
    a.e(f"v_permlane32_swap_b32 v{vL}, v{T1}")
    a.nop(2)
    a.e(f"v_add_f32 v{vL}, v{vL}, v{T1}")
    a.e(f"v_rcp_f32 v{T2}, v{vL}")
    a.nop(12)
    for k in range(96):
        a.e(f"v_mul_f32 v{ACC+k}, v{ACC+k}, v{T2}")
    for s in range(12):
        for k in range(4):
            src = ACC + 16*(s//2) + 8*(s%2) + 2*k
            a.e(f"v_cvt_pk_bf16_f32 v{QF+4*s+k}, v{src}, v{src+1}")
    for s in range(12):
        a.vmem(f"buffer_store_dwordx4 {vr(QF+4*s,4)}, v{vST}, s[{sO}:{sO+3}], 0 offen offset:{0 if False else (s*1024)%4096}" if s < 4 else
               f"buffer_store_dwordx4 {vr(QF+4*s,4)}, v{vST}, s[{sO}:{sO+3}], s{50+s//4-1} offen offset:{(s*1024)%4096}", "ST") if False else None
    a.e("s_mov_b32 s51, 4096")
    a.e("s_mov_b32 s52, 8192")
    for s in range(12):
        if 'nost' in FLAGS: break
        so = "0" if s < 4 else ("s51" if s < 8 else "s52")
        a.vmem(f"buffer_store_dwordx4 {vr(QF+4*s,4)}, v{vST}, s[{sO}:{sO+3}], {so} offen offset:{(s*1024)%4096}{os.environ.get('STF','')}", "ST")
    a.wait_vm_all()
    if 'stamp1' in FLAGS:
        a.e("s_memtime s[74:75]")
        a.e("s_memrealtime s[76:77]")
        a.e("s_load_dwordx2 s[78:79], s[0:1], 88")
        a.e("s_waitcnt lgkmcnt(0)")
        a.e("s_sub_u32 s74, s74, s70")
        a.e("s_sub_u32 s76, s76, s72")
        a.e("s_and_b32 s84, s2, 127")
        a.e("s_cmp_lg_u32 s84, 17")
        a.e("s_cbranch_scc1 K1_NOSTAMP")
        a.e("s_cmp_lg_u32 s44, 0")
        a.e("s_cbranch_scc1 K1_NOSTAMP")
        a.e("s_mov_b32 s80, s78")
        a.e("s_mov_b32 s81, s79")
        a.e("s_mov_b32 s82, 256")
        a.e("s_mov_b32 s83, 0x00020000")
        a.e("v_mov_b32 v218, s74")
        a.e("v_mov_b32 v219, s76")
        a.e("s_lshr_b32 s84, s2, 7")
        a.e("s_lshl_b32 s84, s84, 3")
        a.e("v_mov_b32 v220, s84")
        a.e("buffer_store_dwordx2 v[218:219], v220, s[80:83], 0 offen")
        a.e("s_waitcnt vmcnt(0)")
        a.label("K1_NOSTAMP")
    if PERS:
        a.e("s_add_u32 s2, s2, 256")
        a.e("s_lshl_b32 s61, s44, 6")
        a.e("v_mbcnt_lo_u32_b32 v255, -1, 0")
        a.e("v_mbcnt_hi_u32_b32 v255, -1, v255")
        a.e("v_add_u32 v255, s61, v255")
        a.e("s_add_u32 s60, s60, 1")
        a.e("s_cmp_lt_u32 s60, 4")
        a.e("s_cbranch_scc1 K1_UNIT")
    a.label("K1_END")
    a.e("s_endpgm")

def kernel2(a):
    ACC = 0
    AB = 96
    BB = 128
    vD = 180
    vA = 186
    vB = 187
    vST = 188
    sWo, sOw, sOut = 24, 28, 32
    sWv, sM0, sT, sT3 = 44, 45, 47, 49
    SL = 20480
    a.label(NAME + "_k2_kernel")
    a.e("s_cmp_ge_u32 s2, 128")
    a.e("s_cbranch_scc1 K2_END")
    a.e("s_load_dwordx2 s[8:9], s[0:1], 32")
    a.e("s_load_dwordx2 s[10:11], s[0:1], 72")
    a.e("s_load_dwordx2 s[12:13], s[0:1], 80")
    a.e("s_load_dwordx2 s[4:5], s[0:1], 96")
    a.e("v_lshrrev_b32 v1, 6, v0")
    a.e("v_and_b32 v2, 63, v0")
    a.e("s_nop 0")
    a.e(f"v_readfirstlane_b32 s{sWv}, v1")
    a.e("s_lshr_b32 s3, s2, 2")
    a.e("s_and_b32 s6, s2, 3")
    a.e("s_lshr_b32 s7, s3, 4")
    a.e("s_waitcnt lgkmcnt(0)")
    a.e("s_cmp_eq_u32 s7, 0")
    a.e("s_cselect_b32 s8, s8, s10")
    a.e("s_cselect_b32 s9, s9, s11")
    a.e(f"s_mul_i32 s{sT}, s6, 320")
    a.e(f"s_add_u32 s{sWo}, s8, s{sT}")
    a.e(f"s_addc_u32 s{sWo+1}, s9, 0")
    a.e(f"s_sub_u32 s{sWo+2}, {6144*1280}, s{sT}")
    a.e(f"s_mov_b32 s{sWo+3}, 0x00020000")
    a.e(f"s_mul_i32 s{sT}, s3, {32*49152}")
    a.e(f"s_add_u32 s{sOw}, s4, s{sT}")
    a.e(f"s_addc_u32 s{sOw+1}, s5, 0")
    a.e(f"s_mov_b32 s{sOw+2}, {32*49152}")
    a.e(f"s_mov_b32 s{sOw+3}, 0x00020000")
    a.e("s_and_b32 s50, s3, 15")
    a.e(f"s_mul_i32 s{sT}, s50, {128*2560}")
    a.e(f"s_mul_i32 s51, s7, 1280")
    a.e(f"s_add_u32 s{sT}, s{sT}, s51")
    a.e(f"s_mul_i32 s51, s6, 320")
    a.e(f"s_add_u32 s{sT}, s{sT}, s51")
    a.e(f"s_add_u32 s{sOut}, s12, s{sT}")
    a.e(f"s_addc_u32 s{sOut+1}, s13, 0")
    a.e(f"s_sub_u32 s{sOut+2}, {16*128*2560}, s{sT}")
    a.e(f"s_mov_b32 s{sOut+3}, 0x00020000")
    a.e(f"s_mul_i32 s{sM0}, s{sWv}, 5120")
    a.e(f"s_mul_i32 s{sT}, s{sWv}, {16*1280}")
    for i in range(5):
        a.e(f"v_add_u32 v3, {64*i}, v2")
        a.e(f"v_mul_u32_u24 v4, 3277, v3")
        a.e(f"v_lshrrev_b32 v4, 16, v4")
        a.e(f"v_mul_u32_u24 v5, 20, v4")
        a.e(f"v_sub_u32 v5, v3, v5")
        a.e(f"v_mul_u32_u24 v6, 1280, v4")
        a.e(f"v_lshl_add_u32 v6, v5, 4, v6")
        a.e(f"v_add_u32 v6, s{sT}, v6")
        if i in (1, 2, 3):
            a.e(f"v_subrev_u32 v{vD+i}, {1024*i}, v6")
        else:
            a.e(f"v_mov_b32 v{vD+i}, v6")
    a.e("v_lshrrev_b32 v4, 5, v2")
    a.e("v_bfe_u32 v5, v2, 2, 2")
    a.e("v_and_b32 v6, 3, v2")
    a.e("v_and_b32 v7, 1, v6")
    a.e("v_lshlrev_b32 v7, 1, v7")
    a.e("v_lshrrev_b32 v6, 1, v6")
    a.e("v_or_b32 v6, v6, v7")
    a.e("v_lshlrev_b32 v6, 3, v6")
    a.e("v_bfe_u32 v7, v2, 4, 1")
    a.e("v_lshl_add_u32 v6, v7, 5, v6")
    a.e("v_lshl_add_u32 v8, v4, 3, v5")
    a.e("v_mul_u32_u24 v8, 320, v8")
    a.e(f"v_add_u32 v{vA}, v8, v6")
    a.e(f"s_mul_i32 s{sT}, s{sWv}, 12288")
    a.e(f"v_lshlrev_b32 v8, 4, v2")
    a.e(f"v_add_u32 v{vB}, s{sT}, v8")
    a.e("v_and_b32 v3, 31, v2")
    a.e(f"s_lshl_b32 s{sT}, s{sWv}, 5")
    a.e(f"v_add_u32 v8, s{sT}, v3")
    a.e(f"v_mul_u32_u24 v8, 2560, v8")
    a.e(f"v_lshl_add_u32 v{vST}, v4, 4, v8")
    def dma(slot):
        a.e(f"s_add_u32 m0, s{sM0}, {slot*SL}")
        a.e("s_nop 0")
        for i in range(4):
            off = f" offset:{1024*i}" if i else ""
            a.vmem(f"buffer_load_dwordx4 v{vD+i}, s[{sWo}:{sWo+3}], s61 offen{off} lds", ("T", slot))
        a.e(f"s_add_u32 m0, s{sM0}, {slot*SL+4096}")
        a.e("s_nop 0")
        a.vmem(f"buffer_load_dwordx4 v{vD+4}, s[{sWo}:{sWo+3}], s61 offen lds", ("T", slot))
        a.e(f"s_add_u32 s61, s61, {64*1280}")
    def bload(slot, sub):
        for ks in range(4):
            off = f" offset:{1024*ks}" if ks else ""
            a.vmem(f"buffer_load_dwordx4 {vr(BB+slot*16+4*ks,4)}, v{vB}, s[{sOw}:{sOw+3}], s62 offen{off}", ("B", slot))
        a.e(f"s_add_u32 s62, s62, {4096 if sub < 2 else 49152-8192}")
    a.e("s_mov_b32 s61, 0")
    a.e("s_mov_b32 s62, 0")
    for k in range(5):
        a.e(f"v_mov_b32 v{250+k}, 0")
    for k in range(80):
        a.e(f"v_mov_b32 v{ACC+k}, 0")
    dma(0); bload(0, 0); dma(1); bload(1, 1)
    a.e("s_mov_b32 s60, 0")
    a.label("K2_LOOP")
    vm_at_loop = list(a.vm)
    for sub in range(3):
        slot = sub
        a.wait_vm([("T", slot), ("B", slot)])
        a.e("s_barrier")
        nslot = (sub + 2) % 3
        dma(nslot); bload(nslot, nslot)
        frags = []; info = []
        for ks in range(4):
            for nt in range(5):
                o0 = slot*SL + (16*ks)*320 + nt*64
                o1 = o0 + 4*320
                frags.append((o0, o1)); info.append((ks, nt))
        n = len(frags)
        def issue(i):
            buf = AB + (i % 8)*4
            a.lds(f"ds_read_b64_tr_b16 {vr(buf,2)}, v{vA} offset:{frags[i][0]}", ("F", i))
            a.lds(f"ds_read_b64_tr_b16 {vr(buf+2,2)}, v{vA} offset:{frags[i][1]}", ("F", i))
        for i in range(6): issue(i)
        for i in range(n):
            a.wait_lg(("F", i))
            ks, nt = info[i]
            a.e(f"v_mfma_f32_32x32x16_bf16 {vr(ACC+16*nt,16)}, {vr(AB+(i%8)*4,4)}, {vr(BB+slot*16+4*ks,4)}, {vr(ACC+16*nt,16)}")
            if i + 6 < n: issue(i + 6)
    assert a.vm == vm_at_loop, (a.vm, vm_at_loop)
    a.e("s_add_u32 s60, s60, 1")
    a.e("s_cmp_lt_u32 s60, 32")
    a.e("s_cbranch_scc1 K2_LOOP")
    a.wait_vm_all()
    a.nop(12)
    for nt in range(5):
        for u in range(2):
            for k in range(4):
                src = ACC + 16*nt + 8*u + 2*k
                a.e(f"v_cvt_pk_bf16_f32 v{BB+(nt*2+u)*4+k}, v{src}, v{src+1}")
    for nt in range(5):
        for u in range(2):
            a.vmem(f"buffer_store_dwordx4 {vr(BB+(nt*2+u)*4,4)}, v{vST}, s[{sOut}:{sOut+3}], 0 offen offset:{nt*64+u*32}", "ST")
    a.wait_vm_all()
    a.label("K2_END")
    a.e("s_endpgm")

HEADER = open("cdna_kernels/" + NAME + ".s.ref").read().split("; Override launch geometry")[0]

def kdesc(name, vgpr, sgpr=102):
    acc = (vgpr + 3)//4*4
    return f""".amdhsa_kernel {name}
  .amdhsa_next_free_vgpr {vgpr}
  .amdhsa_next_free_sgpr {sgpr}
  .amdhsa_accum_offset {acc}
  .amdhsa_group_segment_fixed_size 0
  .amdhsa_kernarg_size 104
  .amdhsa_user_sgpr_count 2
  .amdhsa_user_sgpr_kernarg_segment_ptr 1
  .amdhsa_system_sgpr_workgroup_id_x 1
.end_amdhsa_kernel
"""

def main(out):
    a = Asm()
    txt = HEADER
    txt += f"; @launch kernel={NAME}_k0_kernel grid=(320,1,1) block=(256,1,1) lds=0\n"
    txt += f"; @launch kernel={NAME}_k1_kernel grid=({256 if 'pers' in FLAGS else 1024},1,1) block=(256,1,1) lds={100*1024 if 'pers' in FLAGS else 3*SLOT}\n"
    txt += f"; @launch kernel={NAME}_k2_kernel grid=(128,1,1) block=(256,1,1) lds={3*20480}\n"
    txt += '.amdgcn_target "amdgcn-amd-amdhsa--gfx950"\n.text\n'
    for kn, fn in ((NAME + "_k0_kernel", kernel0), (NAME + "_k1_kernel", kernel1), (NAME + "_k2_kernel", kernel2)):
        a = Asm()
        fn(a)
        txt += f".globl {kn}\n.p2align 8\n.type {kn},@function\n" + a.text()
    txt += '.section .rodata,"a"\n.p2align 6\n'
    txt += kdesc(NAME + "_k0_kernel", 32)
    txt += ".p2align 6\n"
    txt += kdesc(NAME + "_k1_kernel", 256)
    txt += ".p2align 6\n"
    txt += kdesc(NAME + "_k2_kernel", 256)
    open(out, "w").write(txt)

if __name__ == "__main__":
    main(sys.argv[1] if len(sys.argv) > 1 else "cdna_kernels/" + NAME + ".s")
```

```python
import sys, math, os, struct
NAME = "concat_heads__gqa_block_cached__gqa_block_cached__near_ridge"
FLAGS = set(os.environ.get('GF', '').split(','))
def env(k, d): return int(os.environ.get(k, str(d)))

class Asm:
    def __init__(self):
        self.lines = []
        self.vm = []
        self.lg = []
    def e(self, s): self.lines.append("    " + s)
    def label(self, s): self.lines.append(s + ":")
    def c(self, s): self.lines.append("    ; " + s)
    def vmem(self, s, tag):
        self.e(s); self.vm.append(tag)
    def wait_vm(self, tags):
        if not isinstance(tags, list): tags = [tags]
        last = -1
        for i, t in enumerate(self.vm):
            if t in tags: last = i
        if last < 0: return
        n = len(self.vm) - 1 - last
        assert n <= 63
        self.e(f"s_waitcnt vmcnt({n})")
        self.vm = self.vm[last+1:]
    def wait_vm_all(self):
        self.e("s_waitcnt vmcnt(0)"); self.vm = []
    def lds(self, s, tag):
        self.e(s); self.lg.append(tag)
    def wait_lg(self, tag):
        last = -1
        for i, t in enumerate(self.lg):
            if t == tag: last = i
        if last < 0: return
        n = len(self.lg) - 1 - last
        assert n <= 15, n
        self.e(f"s_waitcnt lgkmcnt({n})")
        self.lg = self.lg[last+1:]
    def wait_lg_all(self):
        self.e("s_waitcnt lgkmcnt(0)"); self.lg = []
    def nop(self, n):
        while n > 0:
            k = min(n, 8)
            self.e(f"s_nop {k-1}")
            n -= k
    def text(self): return "\n".join(self.lines) + "\n"

def vr(a, n=1): return f"v{a}" if n == 1 else f"v[{a}:{a+n-1}]"
def sr(a, n=1): return f"s{a}" if n == 1 else f"s[{a}:{a+n-1}]"
def f32bits(x): return struct.unpack("<I", struct.pack("<f", x))[0]

class Item:
    __slots__ = ("loads", "mfma", "pre_load", "pre_mfma", "post")
    def __init__(self, loads, mfma):
        self.loads = loads; self.mfma = mfma
        self.pre_load = []; self.pre_mfma = []; self.post = []

class Pipe:
    uid = 0
    def __init__(self, a, AB, NB=8, LOOK=6):
        self.a = a; self.AB = AB; self.NB = NB; self.LOOK = LOOK; self.items = []
    def add(self, loads, mfma):
        it = Item(loads, mfma); self.items.append(it); return it
    def run(self):
        a = self.a; n = len(self.items); L = self.LOOK
        Pipe.uid += 1; u = Pipe.uid
        def issue(j):
            it = self.items[j]
            for h in it.pre_load: h()
            buf = self.AB + (j % self.NB) * 4
            for ins in it.loads: a.lds(ins(buf), ("F", u, j))
        for j in range(min(L, n)): issue(j)
        for i in range(n):
            it = self.items[i]
            for h in it.pre_mfma: h()
            a.wait_lg(("F", u, i))
            it.mfma(self.AB + (i % self.NB) * 4)
            if i + L < n: issue(i + L)
            for h in it.post: h()

def header():
    return open("cdna_kernels/" + NAME + ".s.ref").read().split("; Override launch geometry")[0]

def kdesc(name, vgpr, sgpr=102):
    acc = (vgpr + 3)//4*4
    return f""".amdhsa_kernel {name}
  .amdhsa_next_free_vgpr {vgpr}
  .amdhsa_next_free_sgpr {sgpr}
  .amdhsa_accum_offset {acc}
  .amdhsa_group_segment_fixed_size 0
  .amdhsa_kernarg_size 104
  .amdhsa_user_sgpr_count 2
  .amdhsa_user_sgpr_kernarg_segment_ptr 1
  .amdhsa_system_sgpr_workgroup_id_x 1
.end_amdhsa_kernel
"""

def build(kernels, out):
    txt = header()
    for sfx, fn, grid, block, lds, vg in kernels:
        txt += f"; @launch kernel={NAME}_{sfx}_kernel grid=({grid},1,1) block=({block},1,1) lds={lds}\n"
    txt += '.amdgcn_target "amdgcn-amd-amdhsa--gfx950"\n.text\n'
    seen = set()
    for sfx, fn, grid, block, lds, vg in kernels:
        if sfx in seen: continue
        seen.add(sfx)
        kn = f"{NAME}_{sfx}_kernel"
        a = Asm()
        a.label(kn)
        fn(a)
        txt += f".globl {kn}\n.p2align 8\n.type {kn},@function\n" + a.text()
    txt += '.section .rodata,"a"\n'
    seen = set()
    for sfx, fn, grid, block, lds, vg in kernels:
        if sfx in seen: continue
        seen.add(sfx)
        txt += ".p2align 6\n" + kdesc(f"{NAME}_{sfx}_kernel", vg)
    open(out, "w").write(txt)
```

```python
import sys, os
sys.path.insert(0, "work")
from lib import *
import gen1

XF_OFF = 64*1024*1024
PX_OFF = 72*1024*1024
FL_OFF = 96*1024*1024

def strip(fn):
    def f(a):
        fn(a)
        del a.lines[1]
    return f

def kernel0(a):
    gen1.kernel0(a)
    del a.lines[1]
    idx = a.lines.index("K0_END:")
    extra = Asm()
    extra.e("s_cmp_ge_u32 s2, 2")
    extra.e("s_cbranch_scc1 K0_END")
    extra.e(f"s_add_u32 s24, s4, {FL_OFF}")
    extra.e("s_addc_u32 s25, s5, 0")
    extra.e("s_mov_b32 s26, 65536")
    extra.e("s_mov_b32 s27, 0x00020000")
    extra.e("s_lshl_b32 s3, s2, 8")
    extra.e("v_add_u32 v1, s3, v0")
    extra.e("v_lshlrev_b32 v1, 7, v1")
    extra.e("v_mov_b32 v2, 0")
    extra.e("buffer_store_dword v2, v1, s[24:27], 0 offen")
    extra.e("s_waitcnt vmcnt(0)")
    a.lines[idx:idx] = extra.lines

RING = env('RING', 6)
def kernel2(a):
    ACC = 0
    AB = 80
    BB = 112
    vD = 208
    vA = 213; vB = 214; vST = 215; vPX = 216; T0 = 218; T1 = 219; vA2 = 217
    sWo, sOw, sOut, sPX, sFL = 24, 28, 32, 36, 40
    sWv, sM0, sT, sHH = 44, 45, 47, 48
    SL = 20480
    NB = 6
    a.e(f"s_cmp_ge_u32 s2, {0 if 'k2empty' in FLAGS else 256}")
    a.e("s_cbranch_scc1 K2_END")
    a.e("s_load_dwordx2 s[8:9], s[0:1], 32")
    a.e("s_load_dwordx2 s[10:11], s[0:1], 72")
    a.e("s_load_dwordx2 s[12:13], s[0:1], 80")
    a.e("s_load_dwordx2 s[4:5], s[0:1], 96")
    a.e("v_lshrrev_b32 v1, 6, v0")
    a.e("v_and_b32 v2, 63, v0")
    a.e("s_nop 0")
    a.e(f"v_readfirstlane_b32 s{sWv}, v1")
    a.e("s_and_b32 s6, s2, 7")
    a.e("s_lshr_b32 s7, s2, 3")
    a.e("s_lshr_b32 s3, s7, 3")
    a.e("s_lshl_b32 s6, s6, 2")
    a.e("s_add_u32 s3, s3, s6")
    a.e("s_and_b32 s6, s7, 3")
    a.e(f"s_bfe_u32 s{sHH}, s7, 0x10002")
    a.e("s_lshr_b32 s7, s3, 4")
    a.e("s_waitcnt lgkmcnt(0)")
    a.e("s_cmp_eq_u32 s7, 0")
    a.e("s_cselect_b32 s8, s8, s10")
    a.e("s_cselect_b32 s9, s9, s11")
    a.e(f"s_mul_i32 s{sT}, s6, 320")
    a.e(f"s_mul_i32 s50, s{sHH}, {16*192*1280}")
    a.e(f"s_add_u32 s{sT}, s{sT}, s50")
    a.e(f"s_add_u32 s{sWo}, s8, s{sT}")
    a.e(f"s_addc_u32 s{sWo+1}, s9, 0")
    a.e(f"s_sub_u32 s{sWo+2}, {6144*1280}, s{sT}")
    a.e(f"s_mov_b32 s{sWo+3}, 0x00020000")
    a.e(f"s_lshl_b32 s{sT}, s3, 1")
    a.e(f"s_add_u32 s{sT}, s{sT}, s{sHH}")
    a.e(f"s_mul_i32 s{sT}, s{sT}, {16*49152}")
    a.e(f"s_add_u32 s{sOw}, s4, s{sT}")
    a.e(f"s_addc_u32 s{sOw+1}, s5, 0")
    a.e(f"s_mov_b32 s{sOw+2}, {16*49152}")
    a.e(f"s_mov_b32 s{sOw+3}, 0x00020000")
    a.e("s_and_b32 s50, s3, 15")
    a.e(f"s_mul_i32 s{sT}, s50, {128*2560}")
    a.e(f"s_mul_i32 s51, s7, 1280")
    a.e(f"s_add_u32 s{sT}, s{sT}, s51")
    a.e(f"s_mul_i32 s51, s6, 320")
    a.e(f"s_add_u32 s{sT}, s{sT}, s51")
    a.e(f"s_add_u32 s{sOut}, s12, s{sT}")
    a.e(f"s_addc_u32 s{sOut+1}, s13, 0")
    a.e(f"s_sub_u32 s{sOut+2}, {16*128*2560}, s{sT}")
    a.e(f"s_mov_b32 s{sOut+3}, 0x00020000")
    a.e(f"s_add_u32 s{sPX}, s4, {PX_OFF}")
    a.e(f"s_addc_u32 s{sPX+1}, s5, 0")
    a.e(f"s_mov_b32 s{sPX+2}, {256*2*20480}")
    a.e(f"s_mov_b32 s{sPX+3}, 0x00020000")
    a.e(f"s_add_u32 s{sFL}, s4, {FL_OFF}")
    a.e(f"s_addc_u32 s{sFL+1}, s5, 0")
    a.e(f"s_mov_b32 s{sFL+2}, 65536")
    a.e(f"s_mov_b32 s{sFL+3}, 0x00020000")
    a.e(f"s_mul_i32 s{sM0}, s{sWv}, 5120")
    a.e(f"s_mul_i32 s{sT}, s{sWv}, {16*1280}")
    for i in range(5):
        a.e(f"v_add_u32 v3, {64*i}, v2")
        a.e(f"v_mul_u32_u24 v4, 3277, v3")
        a.e(f"v_lshrrev_b32 v4, 16, v4")
        a.e(f"v_mul_u32_u24 v5, 20, v4")
        a.e(f"v_sub_u32 v5, v3, v5")
        a.e(f"v_mul_u32_u24 v6, 1280, v4")
        a.e(f"v_lshl_add_u32 v6, v5, 4, v6")
        a.e(f"v_add_u32 v6, s{sT}, v6")
        if i in (1, 2, 3):
            a.e(f"v_subrev_u32 v{vD+i}, {1024*i}, v6")
        else:
            a.e(f"v_mov_b32 v{vD+i}, v6")
    a.e("v_lshrrev_b32 v4, 5, v2")
    a.e("v_bfe_u32 v5, v2, 2, 2")
    a.e("v_and_b32 v6, 3, v2")
    a.e("v_and_b32 v7, 1, v6")
    a.e("v_lshlrev_b32 v7, 1, v7")
    a.e("v_lshrrev_b32 v6, 1, v6")
    a.e("v_or_b32 v6, v6, v7")
    a.e("v_lshlrev_b32 v6, 3, v6")
    a.e("v_bfe_u32 v7, v2, 4, 1")
    a.e("v_lshl_add_u32 v6, v7, 5, v6")
    a.e("v_lshl_add_u32 v8, v4, 3, v5")
    a.e("v_mul_u32_u24 v8, 320, v8")
    a.e(f"v_add_u32 v{vA}, v8, v6")
    a.e(f"v_add_u32 v{vA2}, {3*SL}, v{vA}")
    a.e(f"s_mul_i32 s{sT}, s{sWv}, 12288")
    a.e(f"v_lshlrev_b32 v8, 4, v2")
    a.e(f"v_add_u32 v{vB}, s{sT}, v8")
    a.e(f"v_lshlrev_b32 v{vPX}, 4, v2")
    a.e("v_and_b32 v3, 31, v2")
    a.e(f"s_lshl_b32 s{sT}, s{sWv}, 5")
    a.e(f"v_add_u32 v8, s{sT}, v3")
    a.e(f"v_mul_u32_u24 v8, 2560, v8")
    a.e(f"v_lshl_add_u32 v{vST}, v4, 4, v8")
    R = RING
    DD = R - 2
    BD = DD - 1
    def dma(t):
        slot = t % R
        a.e(f"s_add_u32 m0, s{sM0}, {slot*SL}")
        a.e("s_nop 0")
        if 'k2nod' in FLAGS: return
        for i in range(4):
            off = f" offset:{1024*i}" if i else ""
            a.vmem(f"buffer_load_dwordx4 v{vD+i}, s[{sWo}:{sWo+3}], s61 offen{off} lds", ("T", t % 6))
        a.e(f"s_add_u32 m0, s{sM0}, {slot*SL+4096}")
        a.e("s_nop 0")
        a.vmem(f"buffer_load_dwordx4 v{vD+4}, s[{sWo}:{sWo+3}], s61 offen lds", ("T", t % 6))
        a.e(f"s_add_u32 s61, s61, {64*1280}")
    def bload(t):
        bb = BB + (t % NB)*16
        if 'k2nob' in FLAGS: return
        for ks in range(4):
            off = f" offset:{1024*ks}" if ks else ""
            a.vmem(f"buffer_load_dwordx4 {vr(bb+4*ks,4)}, v{vB}, s[{sOw}:{sOw+3}], s62 offen{off}", ("B", t % 6))
        a.e(f"s_add_u32 s62, s62, {4096 if t % 3 < 2 else 49152-8192}")
    a.e("s_mov_b32 s61, 0")
    a.e("s_mov_b32 s62, 0")
    for k in range(80):
        a.e(f"v_mov_b32 v{ACC+k}, 0")
    for t in range(-DD, 1):
        if t + BD >= 0: bload(t + BD)
        dma(t + DD)
    LOOK = 6
    NI = 20
    def frag_issue(t, i):
        slot = t % R
        ks, nt = i // 5, i % 5
        o0 = (slot % 3)*SL + (16*ks)*320 + nt*64
        o1 = o0 + 4*320
        va = vA if slot < 3 else vA2
        buf = AB + ((t*NI + i) % 8)*4
        a.lds(f"ds_read_b64_tr_b16 {vr(buf,2)}, v{va} offset:{o0}", ("F", (t*NI+i) % 120))
        a.lds(f"ds_read_b64_tr_b16 {vr(buf+2,2)}, v{va} offset:{o1}", ("F", (t*NI+i) % 120))
    a.wait_vm([("T", 0)])
    a.e("s_barrier")
    for i in range(LOOK): frag_issue(0, i)
    if 'stamp' in FLAGS:
        a.e("s_memtime s[70:71]")
        a.e("s_memrealtime s[72:73]")
        a.e("s_waitcnt lgkmcnt(0)")
        a.lg = []
        for i in range(LOOK): frag_issue(0, i)
        a.lg = a.lg[-12:]
    a.e("s_mov_b32 s60, 0")
    a.label("K2_LOOP")
    vm0, lg0 = list(a.vm), list(a.lg)
    assert R == 6 or R == 3 or R == 2
    for t in range(6):
        for i in range(NI):
            if i == 0: a.wait_vm([("B", t % 6)])
            a.wait_lg(("F", (t*NI+i) % 120))
            ks, nt = i // 5, i % 5
            if 'k2nom' not in FLAGS: a.e(f"v_mfma_f32_32x32x16_bf16 {vr(ACC+16*nt,16)}, {vr(AB+((t*NI+i)%8)*4,4)}, {vr(BB+(t%NB)*16+4*ks,4)}, {vr(ACC+16*nt,16)}")
            j = i + LOOK
            if j == NI:
                a.wait_vm([("T", (t+1) % 6)])
                a.e("s_barrier")
                bload(t + 1 + BD); dma(t + 1 + DD)
            if j < NI: frag_issue(t, j)
            else: frag_issue(t + 1, j - NI)
    assert a.vm == vm0, (a.vm, vm0)
    assert a.lg == lg0, (a.lg, lg0)
    a.e("s_add_u32 s60, s60, 1")
    a.e("s_cmp_lt_u32 s60, 8")
    a.e("s_cbranch_scc1 K2_LOOP")
    a.wait_vm_all(); a.wait_lg_all()
    if 'stamp' in FLAGS:
        a.e("s_memtime s[74:75]")
        a.e("s_memrealtime s[76:77]")
        a.e("s_load_dwordx2 s[78:79], s[0:1], 88")
        a.e("s_waitcnt lgkmcnt(0)")
        a.e("s_sub_u32 s74, s74, s70")
        a.e("s_sub_u32 s76, s76, s72")
        a.e("s_cmp_lg_u32 s2, 17")
        a.e("s_cbranch_scc1 K2_NOSTAMP")
        a.e("s_mov_b32 s80, 256")
        a.e("s_mov_b32 s81, 0x00020000")
        a.e("s_mov_b32 s82, s80")
        a.e("s_mov_b32 s83, s81")
        a.e("s_mov_b32 s80, s78")
        a.e("s_mov_b32 s81, s79")
        a.e(f"v_mov_b32 v{T0}, s74")
        a.e(f"v_mov_b32 v{T1}, s76")
        a.e(f"s_lshl_b32 s84, s{sWv}, 3")
        a.e(f"v_mov_b32 v220, s84")
        a.e(f"buffer_store_dwordx2 v[{T0}:{T1}], v220, s[80:83], 0 offen")
        a.e("s_waitcnt vmcnt(0)")
        a.label("K2_NOSTAMP")
    a.nop(12)
    a.e(f"s_lshr_b32 s50, s{sWv}, 1")
    a.e(f"s_and_b32 s51, s{sWv}, 1")
    a.e(f"s_cmp_eq_u32 s50, s{sHH}")
    if 'k2noex' in FLAGS: a.e("s_endpgm")
    a.e("s_cbranch_scc1 K2_RECV")
    a.e("s_lshl_b32 s52, s2, 1")
    a.e("s_add_u32 s52, s52, s51")
    a.e("s_mul_i32 s53, s52, 20480")
    for k in range(20):
        if k % 4 == 0 and k: a.e("s_add_u32 s53, s53, 4096")
        a.e(f"buffer_store_dwordx4 {vr(ACC+4*k,4)}, v{vPX}, s[{sPX}:{sPX+3}], s53 offen offset:{(k%4)*1024} sc1")
    a.e("s_waitcnt vmcnt(0)")
    a.e("s_lshl_b32 s52, s52, 7")
    a.e(f"v_mov_b32 v{T0}, 1")
    a.e(f"v_mov_b32 v{T1}, 0")
    a.e("s_mov_b64 exec, 1")
    a.e(f"buffer_store_dword v{T0}, v{T1}, s[{sFL}:{sFL+3}], s52 offen sc1")
    a.e("s_waitcnt vmcnt(0)")
    a.e("s_endpgm")
    a.label("K2_RECV")
    a.e("s_xor_b32 s52, s2, 32")
    a.e("s_lshl_b32 s52, s52, 1")
    a.e("s_add_u32 s52, s52, s51")
    a.e("s_mul_i32 s53, s52, 20480")
    a.e("s_lshl_b32 s52, s52, 7")
    a.e(f"v_mov_b32 v{T1}, 0")
    a.label("K2_POLL")
    a.e(f"buffer_load_dword v{T0}, v{T1}, s[{sFL}:{sFL+3}], s52 offen sc1")
    a.e("s_waitcnt vmcnt(0)")
    a.e(f"v_readfirstlane_b32 s54, v{T0}")
    a.e("s_cmp_eq_u32 s54, 1")
    a.e("s_cbranch_scc1 K2_GOT")
    a.e("s_sleep 2")
    a.e("s_branch K2_POLL")
    a.label("K2_GOT")
    for k in range(20):
        if k % 4 == 0 and k: a.e("s_add_u32 s53, s53, 4096")
        a.e(f"buffer_load_dwordx4 {vr(BB+4*k,4)}, v{vPX}, s[{sPX}:{sPX+3}], s53 offen offset:{(k%4)*1024} sc1")
    for k in range(20):
        a.e(f"s_waitcnt vmcnt({19-k})")
        for j in range(4):
            a.e(f"v_add_f32 v{ACC+4*k+j}, v{ACC+4*k+j}, v{BB+4*k+j}")
    for nt in range(5):
        for u in range(2):
            for k in range(4):
                src = ACC + 16*nt + 8*u + 2*k
                a.e(f"v_cvt_pk_bf16_f32 v{BB+(nt*2+u)*4+k}, v{src}, v{src+1}")
    for nt in range(5):
        for u in range(2):
            a.e(f"buffer_store_dwordx4 {vr(BB+(nt*2+u)*4,4)}, v{vST}, s[{sOut}:{sOut+3}], 0 offen offset:{nt*64+u*32}")
    a.e("s_waitcnt vmcnt(0)")
    a.label("K2_END")
    a.e("s_endpgm")

if __name__ == "__main__":
    out = sys.argv[1] if len(sys.argv) > 1 else "cdna_kernels/" + NAME + ".s"
    ks = [("k0", kernel0, 320, 256, 0, 32),
           ("k1", strip(gen1.kernel1), 1024, 256, 3*24576, 256),
           ("k2", kernel2, 256, 256, RING*20480, 256)]
    if 'nok1' in FLAGS: ks = [ks[0], ks[0], ks[2]]
    build(ks, out)
```

```python
import sys, os, math
sys.path.insert(0, "work")
from lib import *

PX_OFF = 72*1024*1024
FL_OFF = 96*1024*1024
CSC = (192 ** -0.5) * math.log2(math.e)
THR = 8.0
SLOT = 12800
MF = "v_mfma_f32_16x16x32_bf16"

def stamp_begin(a):
    a.e("s_memtime s[70:71]")
    a.e("s_memrealtime s[72:73]")

def stamp_end(a, lab, sWv, modmask=127, modval=17, shift=7):
    a.e("s_memtime s[74:75]")
    a.e("s_memrealtime s[76:77]")
    a.e("s_load_dwordx2 s[78:79], s[0:1], 88")
    a.e("s_waitcnt lgkmcnt(0)")
    a.e("s_sub_u32 s74, s74, s70")
    a.e("s_sub_u32 s76, s76, s72")
    a.e(f"s_and_b32 s84, s2, {modmask}")
    a.e(f"s_cmp_lg_u32 s84, {modval}")
    a.e(f"s_cbranch_scc1 {lab}")
    a.e(f"s_cmp_lg_u32 s{sWv}, 0")
    a.e(f"s_cbranch_scc1 {lab}")
    a.e("s_mov_b32 s80, s78")
    a.e("s_mov_b32 s81, s79")
    a.e("s_mov_b32 s82, 256")
    a.e("s_mov_b32 s83, 0x00020000")
    a.e("v_mov_b32 v250, s74")
    a.e("v_mov_b32 v251, s76")
    a.e(f"s_lshr_b32 s84, s2, {shift}")
    a.e("s_lshl_b32 s84, s84, 3")
    a.e("v_mov_b32 v252, s84")
    a.e("buffer_store_dwordx2 v[250:251], v252, s[80:83], 0 offen")
    a.e("s_waitcnt vmcnt(0)")
    a.label(lab)

def kernel1(a):
    ACC = 0; QF = 96; S = 144; P = 176; AB = 192
    XB = 96
    NXB = 6
    NM = 224
    vL = 232
    vKa, vKb, vVa, vVb = 234, 235, 236, 237
    vDKV, vDW, vX, vST = 238, 239, 240, 241
    T = 242
    sK, sV, sW, sX, sO = 24, 28, 32, 36, 40
    sWv = 44; sWM = 45; sC = 46; sT = 47; sT2 = 48; sT3 = 49; sQ1 = 50; sTH = 51
    sEX = 52
    LOOK = env('LOOK', 6)
    WSTR = env('WSTR', 12288)
    NOSM = 'nosm' in FLAGS; NOKV = 'nokv' in FLAGS; NOCOMP = 'nocomp' in FLAGS
    def acc(mt, qt): return ACC + (mt*2 + qt)*4
    def qf(s, qt): return QF + (s*2 + qt)*4
    def sreg(b, kt, qt): return S + b*16 + (kt*2 + qt)*4
    a.e("s_cmp_ge_u32 s2, 1024")
    a.e("s_cbranch_scc1 K1_END")
    if 'stamp1' in FLAGS: stamp_begin(a)
    if 'tl' in FLAGS: a.e("s_memrealtime s[70:71]")
    if 'tl2' in FLAGS: a.e("s_memrealtime s[100:101]")
    a.e("s_load_dwordx8 s[8:15], s[0:1], 0")
    a.e("s_load_dwordx8 s[16:23], s[0:1], 40")
    a.e("s_load_dwordx2 s[4:5], s[0:1], 96")
    a.e("v_lshrrev_b32 v1, 6, v0")
    a.e("v_and_b32 v2, 63, v0")
    a.e("s_nop 0")
    a.e(f"v_readfirstlane_b32 s{sWv}, v1")
    a.e("s_lshr_b32 s3, s2, 9")
    a.e("s_and_b32 s6, s2, 511")
    a.e("s_and_b32 s7, s2, 31")
    a.e("s_lshr_b32 s54, s6, 5")
    a.e("v_and_b32 v3, 15, v2")
    a.e("v_lshrrev_b32 v4, 4, v2")
    a.e("v_lshrrev_b32 v5, 1, v3")
    a.e("v_mul_u32_u24 v5, 800, v5")
    a.e("v_and_b32 v6, 1, v3")
    a.e("v_mul_u32_u24 v6, 384, v6")
    a.e("v_add_u32 v5, v5, v6")
    a.e(f"v_lshl_add_u32 v{vKa}, v4, 4, v5")
    a.e(f"v_add_u32 v{vKb}, {3*SLOT}, v{vKa}")
    a.e("v_lshrrev_b32 v5, 2, v2")
    a.e("v_lshrrev_b32 v6, 1, v5")
    a.e("v_mul_u32_u24 v6, 800, v6")
    a.e("v_and_b32 v7, 1, v5")
    a.e("v_mul_u32_u24 v7, 384, v7")
    a.e("v_add_u32 v6, v6, v7")
    a.e("v_and_b32 v7, 3, v2")
    a.e(f"v_lshl_add_u32 v{vVa}, v7, 3, v6")
    a.e(f"v_add_u32 v{vVb}, {3*SLOT}, v{vVa}")
    a.e(f"s_mul_i32 s{sT}, s{sWv}, 3072")
    a.e("v_lshlrev_b32 v5, 4, v2")
    a.e(f"v_add_u32 v{vDKV}, s{sT}, v5")
    a.e("v_cmp_le_u32 vcc, 24, v2")
    a.e(f"v_mov_b32 v6, {WSTR-384}")
    a.e("s_nop 0")
    a.e("v_cndmask_b32 v6, 0, v6, vcc")
    a.e("v_add_u32 v6, v6, v5")
    a.e(f"s_mul_i32 s{sT}, s{sWv}, {8*WSTR}")
    a.e(f"v_add_u32 v{vDW}, s{sT}, v6")
    a.e(f"s_lshl_b32 s{sT}, s{sWv}, 5")
    a.e(f"v_add_u32 v5, s{sT}, v3")
    a.e("v_mul_u32_u24 v5, 1280, v5")
    a.e(f"v_lshl_add_u32 v{vX}, v4, 4, v5")
    a.e(f"s_mul_i32 s{sT}, s{sWv}, 12288")
    a.e("v_lshlrev_b32 v5, 4, v2")
    a.e(f"v_add_u32 v{vST}, s{sT}, v5")
    a.e(f"s_mul_i32 s{sWM}, s{sWv}, 3200")
    a.e(f"s_mov_b32 s{sC}, 0x{f32bits(CSC):08x}")
    a.e(f"s_mov_b32 s{sTH}, 0x{f32bits(THR):08x}")
    a.e(f"s_mov_b32 s{sQ1}, 20480")
    a.e(f"s_mov_b32 s{sEX}, -1")
    a.e(f"s_mov_b32 s{sEX+1}, 0xffff")
    for k in range(8): a.e(f"v_mov_b32 v{NM+k}, 0")
    a.e(f"v_mov_b32 v{vL}, 0")
    a.e(f"v_mov_b32 v{vL+1}, 0")
    a.e("s_waitcnt lgkmcnt(0)")
    a.e("s_cmp_eq_u32 s3, 0")
    for i in range(8):
        a.e(f"s_cselect_b32 s{8+i}, s{8+i}, s{16+i}")
    a.e(f"s_mul_i32 s{sT}, s7, 384")
    a.e(f"s_add_u32 s{sW}, s14, s{sT}")
    a.e(f"s_addc_u32 s{sW+1}, s15, 0")
    a.e(f"s_sub_u32 s{sW+2}, {640*12288}, s{sT}")
    a.e(f"s_mov_b32 s{sW+3}, 0x00020000")
    a.e(f"s_mul_i32 s{sT}, s54, 163840")
    a.e(f"s_add_u32 s{sX}, s8, s{sT}")
    a.e(f"s_addc_u32 s{sX+1}, s9, 0")
    a.e(f"s_mov_b32 s{sX+2}, 163840")
    a.e(f"s_mov_b32 s{sX+3}, 0x00020000")
    a.e(f"s_mul_i32 s{sT}, s6, 196608")
    a.e(f"s_add_u32 s{sK}, s10, s{sT}")
    a.e(f"s_addc_u32 s{sK+1}, s11, 0")
    a.e(f"s_mov_b32 s{sK+2}, 196608")
    a.e(f"s_mov_b32 s{sK+3}, 0x00020000")
    a.e(f"s_add_u32 s{sV}, s12, s{sT}")
    a.e(f"s_addc_u32 s{sV+1}, s13, 0")
    a.e(f"s_mov_b32 s{sV+2}, 196608")
    a.e(f"s_mov_b32 s{sV+3}, 0x00020000")
    a.e(f"s_mul_i32 s{sT}, s2, 49152")
    a.e(f"s_add_u32 s{sO}, s4, s{sT}")
    a.e(f"s_addc_u32 s{sO+1}, s5, 0")
    a.e(f"s_mov_b32 s{sO+2}, 49152")
    a.e(f"s_mov_b32 s{sO+3}, 0x00020000")

    steps = [("W", t) for t in range(20)]
    kv = [("K", 0)]
    for i in range(1, 16): kv += [("K", i), ("V", i-1)]
    kv += [("V", 15)]
    steps += kv
    NS = len(steps)
    def slot_of(n): return n % 6
    NT = " nt" if 'nt' in FLAGS else ""

    def dma(n):
        kind, idx = steps[n]
        slot = slot_of(n)
        if kind != "W" and NOKV and idx > 1: return
        if kind == "W" and 'now' in FLAGS and idx > 5: return
        a.e(f"s_mov_b64 exec, s[{sEX}:{sEX+1}]")
        if kind == "W":
            for i in range(4):
                a.e(f"s_add_u32 m0, s{sWM}, {slot*SLOT + i*800}")
                a.e(f"s_mov_b32 s{sT3}, {idx*32*WSTR + i*2*WSTR}")
                a.vmem(f"buffer_load_dwordx4 v{vDW}, s[{sW}:{sW+3}], s{sT3} offen lds", ("T", n))
        else:
            srd = sK if kind == "K" else sV
            a.e(f"s_mov_b32 s{sT3}, {idx*12288}")
            for i in range(4):
                a.e(f"s_add_u32 m0, s{sWM}, {slot*SLOT + i*32}")
                a.e("s_nop 0")
                off = f" offset:{768*i}" if i else ""
                a.vmem(f"buffer_load_dwordx4 v{vDKV}, s[{srd}:{srd+3}], s{sT3} offen{off}{NT} lds", ("T", n))
        a.e("s_mov_b64 exec, -1")
    def dma_piece(n, i):
        kind, idx = steps[n]
        slot = slot_of(n)
        if kind != "W" and NOKV and idx > 1: return
        if kind == "W" and 'now' in FLAGS and idx > 5: return
        a.e(f"s_mov_b64 exec, s[{sEX}:{sEX+1}]")
        if kind == "W":
            a.e(f"s_add_u32 m0, s{sWM}, {slot*SLOT + i*800}")
            a.e(f"s_mov_b32 s{sT3}, {idx*32*WSTR + i*2*WSTR}")
            a.vmem(f"buffer_load_dwordx4 v{vDW}, s[{sW}:{sW+3}], s{sT3} offen lds", ("T", n))
        else:
            srd = sK if kind == "K" else sV
            a.e(f"s_add_u32 m0, s{sWM}, {slot*SLOT + i*32}")
            a.e(f"s_mov_b32 s{sT3}, {idx*12288}")
            off = f" offset:{768*i}" if i else ""
            a.vmem(f"buffer_load_dwordx4 v{vDKV}, s[{srd}:{srd+3}], s{sT3} offen{off}{NT} lds", ("T", n))
        a.e("s_mov_b64 exec, -1")
    def xload(t, qts=(0,1)):
        buf = XB + (t % NXB)*8
        if 'nox' in FLAGS and t > 5: return
        for qt in qts:
            so = "0" if qt == 0 else f"s{sQ1}"
            off = f" offset:{t*64}" if t else ""
            a.vmem(f"buffer_load_dwordx4 {vr(buf+4*qt,4)}, v{vX}, s[{sX}:{sX+3}], {so} offen{off}", ("X", t))
    def xswap(t):
        buf = XB + (t % NXB)*8
        if 'noxs' in FLAGS: return
        for qt in range(2):
            b = buf + 4*qt
            a.e(f"v_permlane16_swap_b32 v{b}, v{b+2}")
            a.e(f"v_permlane16_swap_b32 v{b+1}, v{b+3}")
        a.e("s_nop 0")
        for qt in range(2):
            b = buf + 4*qt
            a.e(f"v_permlane32_swap_b32 v{b}, v{b+2}")
            a.e(f"v_permlane32_swap_b32 v{b+1}, v{b+3}")

    TL2 = [0,1,2,4,6,8,10,12,14,16,18,20,22,24,28,32,36,40,44,48]
    SP0 = env('SP0', 1); SPS = env('SPS', 2)
    WPX = env('WPX', 0); PW = env('PW', 0); PK = env('PK', 0)
    if 'wprio' in FLAGS: a.e("s_setprio 3")
    for t in range(6):
        dma(t); xload(t)
    if 'wprio' in FLAGS: a.e(f"s_setprio {PW}")
    a.e("s_cmp_ge_u32 s2, 512")
    a.e("s_cbranch_scc1 K1_NOFL")
    a.e(f"s_add_u32 s56, s4, {FL_OFF}")
    a.e("s_addc_u32 s57, s5, 0")
    a.e("s_mov_b32 s58, 65536")
    a.e("s_mov_b32 s59, 0x00020000")
    a.e(f"s_lshl_b32 s{sT}, s2, 7")
    a.e(f"v_mov_b32 v{T}, 0")
    a.e("s_mov_b64 exec, 1")
    a.e(f"buffer_store_dword v{T}, v{T}, s[56:59], s{sT} offen")
    a.e("s_mov_b64 exec, -1")
    a.label("K1_NOFL")
    a.vm.append(("FL", 0))
    OPT_EXTRA = True

    a.vm.pop()

    slow_blocks = []
    def sync(n):
        kind, idx = steps[n]
        tags = [("T", n)]
        if kind == "W": tags.append(("X", idx))
        a.wait_vm(tags)
        if 'nobar' not in FLAGS: a.e("s_barrier")
        if n >= 2 and n + 4 < NS and 'spread' not in FLAGS:
            hp = 'wprio' in FLAGS and n + 4 < 20 + WPX
            if hp: a.e("s_setprio 3")
            dma(n + 4)
            if n + 4 < 20: xload(n + 4)
            if hp: a.e(f"s_setprio {PW if n < 20 else PK}")
        if n == 20 and PK != PW: a.e(f"s_setprio {PK}")
        if kind == "W": xswap(idx)
        if n == 20 and 'prio' in FLAGS: a.e("s_setprio 2")
        if 'tl2' in FLAGS and n in TL2: a.e(f"s_memrealtime s[{60+2*TL2.index(n)}:{61+2*TL2.index(n)}]")
        if n == 20 and 'tl' in FLAGS: a.e("s_memrealtime s[72:73]")
        if n == 36 and 'tl' in FLAGS: a.e("s_memrealtime s[76:77]")

    def check_ops(i):
        b = i % 2
        v = [sreg(b, kt, qt) + k for qt in range(2) for kt in range(2) for k in range(4)]
        ops = []
        for j in range(5):
            ops.append(f"v_max3_f32 v{T+j}, v{v[3*j]}, v{v[3*j+1]}, v{v[3*j+2]}")
        ops.append(f"v_max3_f32 v{T}, v{T}, v{T+1}, v{v[15]}")
        ops.append(f"v_max3_f32 v{T+2}, v{T+2}, v{T+3}, v{T+4}")
        ops.append(f"v_max_f32 v{T}, v{T}, v{T+2}")
        ops.append(f"v_cmp_lt_f32 vcc, s{sTH}, v{T}")
        return ops
    def exp_ops(i):
        b = i % 2
        ops = []
        seq = []
        for qt in range(2):
            for kt in range(2):
                r = sreg(b, kt, qt)
                seq.append((qt, kt, r))
        E = []; A = []; C = []
        for (qt, kt, r) in seq:
            E.append([f"v_exp_f32 v{r+k}, v{r+k}" for k in range(4)])
            A.append([f"v_add_f32 v{T+6+qt}, v{r}, v{r+1}" if kt == 0 else f"v_add_f32 v{T+8+qt}, v{r}, v{r+1}",
                      f"v_add_f32 v{T+10}, v{r+2}, v{r+3}",
                      (f"v_add_f32 v{T+6+qt}, v{T+6+qt}, v{T+10}" if kt == 0 else f"v_add_f32 v{T+8+qt}, v{T+8+qt}, v{T+10}")]
                     + ([f"v_add_f32 v{T+6+qt}, v{T+6+qt}, v{T+8+qt}", f"v_add_f32 v{vL+qt}, v{vL+qt}, v{T+6+qt}"] if kt == 1 else []))
            C.append([f"v_cvt_pk_bf16_f32 v{P+4*qt+2*kt}, v{r}, v{r+1}", f"v_cvt_pk_bf16_f32 v{P+4*qt+2*kt+1}, v{r+2}, v{r+3}"])
        for j in range(4):
            ops += E[j]
            if j >= 1: ops += A[j-1] + C[j-1]
        ops += A[3] + C[3] + ["s_nop 1"]
        return ops
    def slow_code(i, first):
        b = i % 2
        a.nop(12)
        for qt in range(2):
            v = [sreg(b, kt, qt) + k for kt in range(2) for k in range(4)]
            t0, t1 = T + 2*qt, T + 2*qt + 1
            a.e(f"v_max3_f32 v{t0}, v{v[0]}, v{v[1]}, v{v[2]}")
            a.e(f"v_max3_f32 v{t1}, v{v[3]}, v{v[4]}, v{v[5]}")
            a.e(f"v_max3_f32 v{t0}, v{t0}, v{v[6]}, v{v[7]}")
            a.e(f"v_max_f32 v{t0}, v{t0}, v{t1}")
            a.e(f"v_mov_b32 v{t1}, v{t0}")
        a.nop(2)
        for qt in range(2):
            a.e(f"v_permlane32_swap_b32 v{T+2*qt}, v{T+2*qt+1}")
        a.nop(1)
        for qt in range(2):
            a.e(f"v_max_f32 v{T+2*qt}, v{T+2*qt}, v{T+2*qt+1}")
            a.e(f"v_mov_b32 v{T+2*qt+1}, v{T+2*qt}")
        a.nop(2)
        for qt in range(2):
            a.e(f"v_permlane16_swap_b32 v{T+2*qt}, v{T+2*qt+1}")
        a.nop(1)
        for qt in range(2):
            d = T + 2*qt
            a.e(f"v_max_f32 v{d}, v{d}, v{d+1}")
            if not first: a.e(f"v_max_f32 v{d}, 0, v{d}")
            v = [sreg(b, kt, qt) + k for kt in range(2) for k in range(4)]
            for r in v: a.e(f"v_sub_f32 v{r}, v{r}, v{d}")
            a.e(f"v_sub_f32 v{NM+4*qt}, v{NM+4*qt}, v{d}")
            for k in range(1, 4): a.e(f"v_mov_b32 v{NM+4*qt+k}, v{NM+4*qt}")
            if not first:
                a.e(f"v_sub_f32 v{d+1}, 0, v{d}")
                a.e(f"v_exp_f32 v{d+1}, v{d+1}")
                a.e("s_nop 0")
                a.e(f"v_mul_f32 v{vL+qt}, v{vL+qt}, v{d+1}")
                for mt in range(12):
                    for k in range(4):
                        a.e(f"v_mul_f32 v{acc(mt,qt)+k}, v{acc(mt,qt)+k}, v{d+1}")
        a.nop(2)

    class It: pass
    items = []
    def add_item(n, loads, mf):
        it = It(); it.n = n; it.loads = loads; it.mf = mf; it.pre_load = []; it.pre = []; it.post = []
        items.append(it); return it
    def spread(its, ops, start=0, end=None):
        its = its[start:end]
        k = len(its)
        per = [[] for _ in range(k)]
        for j, o in enumerate(ops): per[j * k // len(ops)].append(o)
        for it, l in zip(its, per):
            for o in l: it.post.append(o)
    for n, (kind, idx) in enumerate(steps):
        slot = slot_of(n)
        sb = (slot % 3) * SLOT
        its = []
        if kind == "W" or kind == "V":
            va = vVa if slot < 3 else vVb
            for mt in range(12):
                o = sb + mt*32
                loads = [lambda d, o=o, va=va: f"ds_read_b64_tr_b16 {vr(d,2)}, v{va} offset:{o}",
                         lambda d, o=o, va=va: f"ds_read_b64_tr_b16 {vr(d+2,2)}, v{va} offset:{o+6400}"]
                def mf(buf, mt=mt, kind=kind, idx=idx):
                    for qt in range(2):
                        bsrc = XB + (idx % NXB)*8 + 4*qt if kind == "W" else P + 4*qt
                        cc = "0" if idx == 0 else vr(acc(mt, qt), 4)
                        a.e(f"{MF} {vr(acc(mt,qt),4)}, {vr(buf,4)}, {vr(bsrc,4)}, {cc}")
                its.append(add_item(n, loads, mf))
        else:
            va = vKa if slot < 3 else vKb
            b = idx % 2
            for s in range(6):
                for kt in range(2):
                    o = sb + kt*6400 + s*64
                    loads = [lambda d, o=o, va=va: f"ds_read_b128 {vr(d,4)}, v{va} offset:{o}"]
                    def mf(buf, s=s, kt=kt, b=b):
                        for qt in range(2):
                            cc = vr(NM + 4*qt, 4) if s == 0 else vr(sreg(b, kt, qt), 4)
                            a.e(f"{MF} {vr(sreg(b,kt,qt),4)}, {vr(buf,4)}, {vr(qf(s,qt),4)}, {cc}")
                    its.append(add_item(n, loads, mf))
        its[0].pre_load.append(lambda n=n: sync(n))
        if 'spread' in FLAGS and n >= 2 and n + 4 < NS:
            for i in range(4):
                its[SP0 + SPS*i].pre_load.append(lambda n=n, i=i: dma_piece(n + 4, i))
            if n + 4 < 20:
                its[9].pre_load.append(lambda n=n: xload(n + 4, (0,)))
                its[11].pre_load.append(lambda n=n: xload(n + 4, (1,)))
        if kind == "K" and idx == 0:
            def qconv():
                a.nop(8)
                for k in range(96): a.e(f"v_mul_f32 v{ACC+k}, s{sC}, v{ACC+k}")
                for s in range(6):
                    for qt in range(2):
                        d = qf(s, qt)
                        for h in range(2):
                            src = acc(2*s + h, qt)
                            a.e(f"v_cvt_pk_bf16_f32 v{d+2*h}, v{src}, v{src+1}")
                            a.e(f"v_cvt_pk_bf16_f32 v{d+2*h+1}, v{src+2}, v{src+3}")
                a.nop(1)
                for s in range(6):
                    for qt in range(2):
                        d = qf(s, qt)
                        a.e(f"v_permlane32_swap_b32 v{d}, v{d+2}")
                        a.e(f"v_permlane32_swap_b32 v{d+1}, v{d+3}")
                a.nop(1)
                for s in range(6):
                    for qt in range(2):
                        d = qf(s, qt)
                        a.e(f"v_permlane16_swap_b32 v{d}, v{d+2}")
                        a.e(f"v_permlane16_swap_b32 v{d+1}, v{d+3}")
                a.nop(2)
            its[0].pre.append(qconv)
        if kind == "K" and idx == 1 and not NOSM:
            its[0].pre.append(lambda: slow_code(0, True))
        if kind == "K" and idx >= 1 and not NOSM:
            spread(its, exp_ops(idx - 1))
        if kind == "V" and idx < 15 and not NOSM:
            spread(its, check_ops(idx + 1), 3, 9)
            def br(i=idx+1):
                a.e(f"s_cbranch_vccnz K1_SLOW{i}")
                a.label(f"K1_BACK{i}")
                slow_blocks.append(i)
            its[-1].post.append(br)
        if kind == "V" and idx == 15 and not NOSM:
            def lastexp():
                for o in exp_ops(15): a.e(o)
                a.nop(2)
            its[0].pre.append(lastexp)

    n_it = len(items)
    NB = 8
    def issue(j):
        it = items[j]
        for h in it.pre_load: h()
        buf = AB + (j % NB)*4
        if NOCOMP: return
        for ins in it.loads: a.lds(ins(buf), ("F", j))
    for j in range(LOOK): issue(j)
    for i in range(n_it):
        it = items[i]
        if not NOCOMP:
            for h in it.pre: h()
            a.wait_lg(("F", i))
            it.mf(AB + (i % NB)*4)
        if i + LOOK < n_it: issue(i + LOOK)
        if not NOCOMP:
            for o in it.post:
                if callable(o): o()
                else: a.e(o)

    a.nop(8)
    for qt in range(2):
        a.e(f"v_mov_b32 v{T+qt}, v{vL+qt}")
    a.nop(2)
    for qt in range(2):
        a.e(f"v_permlane32_swap_b32 v{vL+qt}, v{T+qt}")
    a.nop(1)
    for qt in range(2):
        a.e(f"v_add_f32 v{vL+qt}, v{vL+qt}, v{T+qt}")
        a.e(f"v_mov_b32 v{T+qt}, v{vL+qt}")
    a.nop(2)
    for qt in range(2):
        a.e(f"v_permlane16_swap_b32 v{vL+qt}, v{T+qt}")
    a.nop(1)
    for qt in range(2):
        a.e(f"v_add_f32 v{vL+qt}, v{vL+qt}, v{T+qt}")
    for qt in range(2):
        a.e(f"v_rcp_f32 v{T+qt}, v{vL+qt}")
    a.e("s_mov_b32 s56, 4096")
    a.e("s_mov_b32 s57, 8192")
    STF = os.environ.get('STF', '')
    for qt in range(2):
        for m in range(6):
            d = QF + (qt*6 + m)*4
            for h in range(2):
                src = acc(2*m + h, qt)
                for k in range(4): a.e(f"v_mul_f32 v{src+k}, v{src+k}, v{T+qt}")
            for h in range(2):
                src = acc(2*m + h, qt)
                a.e(f"v_cvt_pk_bf16_f32 v{d+2*h}, v{src}, v{src+1}")
                a.e(f"v_cvt_pk_bf16_f32 v{d+2*h+1}, v{src+2}, v{src+3}")
            f = qt*6 + m
            so = "0" if f < 4 else ("s56" if f < 8 else "s57")
            if 'nost' not in FLAGS:
                a.e(f"buffer_store_dwordx4 {vr(d,4)}, v{vST}, s[{sO}:{sO+3}], {so} offen offset:{(f*1024)%4096}{STF}")
    if 'stamp1' in FLAGS:
        a.e("s_waitcnt vmcnt(0)")
        stamp_end(a, "K1_NOSTAMP", sWv)
    if 'tl2' in FLAGS:
        a.e("s_memrealtime s[58:59]")
        a.e(f"s_add_u32 s52, s4, {100*1024*1024}")
        a.e("s_addc_u32 s53, s5, 0")
        a.e("s_mov_b32 s54, 131072")
        a.e("s_mov_b32 s55, 0x00020000")
        a.e("s_waitcnt lgkmcnt(0)")
        a.e(f"s_cmp_lg_u32 s{sWv}, 0")
        a.e("s_cbranch_scc1 K1_END")
        a.e("v_mov_b32 v0, s100")
        for i in range(20): a.e(f"v_mov_b32 v{1+i}, s{60+2*i}")
        a.e("v_mov_b32 v21, s58")
        a.e("v_mov_b32 v22, 0")
        a.e("v_mov_b32 v23, 0")
        a.e("s_lshl_b32 s44, s2, 7")
        a.e("v_mov_b32 v24, 0")
        a.e("s_mov_b64 exec, 1")
        for i in range(6):
            a.e(f"buffer_store_dwordx4 v[{4*i}:{4*i+3}], v24, s[52:55], s44 offen offset:{16*i}")
    if 'tl' in FLAGS:
        a.e("s_memrealtime s[74:75]")
        a.e("s_getreg_b32 s78, hwreg(HW_REG_HW_ID)")
        a.e("s_getreg_b32 s79, hwreg(HW_REG_XCC_ID)")
        a.e(f"s_add_u32 s80, s4, {100*1024*1024}")
        a.e("s_addc_u32 s81, s5, 0")
        a.e("s_mov_b32 s82, 65536")
        a.e("s_mov_b32 s83, 0x00020000")
        a.e("s_waitcnt lgkmcnt(0)")
        a.e(f"s_cmp_lg_u32 s{sWv}, 0")
        a.e("s_cbranch_scc1 K1_END")
        a.e("v_mov_b32 v0, s70")
        a.e("v_mov_b32 v1, s72")
        a.e("v_mov_b32 v2, s76")
        a.e("v_mov_b32 v3, s74")
        a.e("v_mov_b32 v4, s78")
        a.e("v_mov_b32 v5, s79")
        a.e("v_mov_b32 v6, 0")
        a.e("v_mov_b32 v7, 0")
        a.e("s_lshl_b32 s84, s2, 5")
        a.e("v_mov_b32 v8, 0")
        a.e("s_mov_b64 exec, 1")
        a.e("buffer_store_dwordx4 v[0:3], v8, s[80:83], s84 offen")
        a.e("buffer_store_dwordx4 v[4:7], v8, s[80:83], s84 offen offset:16")
    a.label("K1_END")
    a.e("s_endpgm")
    for i in slow_blocks:
        a.label(f"K1_SLOW{i}")
        slow_code(i, False)
        a.e(f"s_branch K1_BACK{i}")

RING = env('RING', 6)
def kernel2(a):
    ACC = 0
    AB = 80
    BB = 112
    vD = 208
    vA, vAo, vA2, vAo2 = 213, 214, 215, 216
    vB, vB2, vST, vPX = 217, 218, 219, 220
    T0 = 222; T1 = 223
    sWo, sOw, sOut, sPX, sFL = 24, 28, 32, 36, 40
    sWv, sM0, sT, sHH = 44, 45, 47, 48
    SL = 20480
    NB = 6
    def acc(nt, qt): return ACC + (nt*2 + qt)*4
    a.e(f"s_cmp_ge_u32 s2, {0 if 'k2empty' in FLAGS else 256}")
    a.e("s_cbranch_scc1 K2_END")
    a.e("s_load_dwordx2 s[8:9], s[0:1], 32")
    a.e("s_load_dwordx2 s[10:11], s[0:1], 72")
    a.e("s_load_dwordx2 s[12:13], s[0:1], 80")
    a.e("s_load_dwordx2 s[4:5], s[0:1], 96")
    a.e("v_lshrrev_b32 v1, 6, v0")
    a.e("v_and_b32 v2, 63, v0")
    a.e("s_nop 0")
    a.e(f"v_readfirstlane_b32 s{sWv}, v1")
    a.e("s_and_b32 s6, s2, 7")
    a.e("s_lshr_b32 s7, s2, 3")
    a.e("s_lshr_b32 s3, s7, 3")
    a.e("s_lshl_b32 s6, s6, 2")
    a.e("s_add_u32 s3, s3, s6")
    a.e("s_and_b32 s6, s7, 3")
    a.e(f"s_bfe_u32 s{sHH}, s7, 0x10002")
    a.e("s_lshr_b32 s7, s3, 4")
    a.e("s_waitcnt lgkmcnt(0)")
    a.e("s_cmp_eq_u32 s7, 0")
    a.e("s_cselect_b32 s8, s8, s10")
    a.e("s_cselect_b32 s9, s9, s11")
    a.e(f"s_mul_i32 s{sT}, s6, 320")
    a.e(f"s_mul_i32 s50, s{sHH}, {16*192*1280}")
    a.e(f"s_add_u32 s{sT}, s{sT}, s50")
    a.e(f"s_add_u32 s{sWo}, s8, s{sT}")
    a.e(f"s_addc_u32 s{sWo+1}, s9, 0")
    a.e(f"s_sub_u32 s{sWo+2}, {6144*1280}, s{sT}")
    a.e(f"s_mov_b32 s{sWo+3}, 0x00020000")
    a.e(f"s_lshl_b32 s{sT}, s3, 1")
    a.e(f"s_add_u32 s{sT}, s{sT}, s{sHH}")
    a.e(f"s_mul_i32 s{sT}, s{sT}, {16*49152}")
    a.e(f"s_add_u32 s{sOw}, s4, s{sT}")
    a.e(f"s_addc_u32 s{sOw+1}, s5, 0")
    a.e(f"s_mov_b32 s{sOw+2}, {16*49152}")
    a.e(f"s_mov_b32 s{sOw+3}, 0x00020000")
    a.e("s_and_b32 s50, s3, 15")
    a.e(f"s_mul_i32 s{sT}, s50, {128*2560}")
    a.e(f"s_mul_i32 s51, s7, 1280")
    a.e(f"s_add_u32 s{sT}, s{sT}, s51")
    a.e(f"s_mul_i32 s51, s6, 320")
    a.e(f"s_add_u32 s{sT}, s{sT}, s51")
    a.e(f"s_add_u32 s{sOut}, s12, s{sT}")
    a.e(f"s_addc_u32 s{sOut+1}, s13, 0")
    a.e(f"s_sub_u32 s{sOut+2}, {16*128*2560}, s{sT}")
    a.e(f"s_mov_b32 s{sOut+3}, 0x00020000")
    a.e(f"s_add_u32 s{sPX}, s4, {PX_OFF}")
    a.e(f"s_addc_u32 s{sPX+1}, s5, 0")
    a.e(f"s_mov_b32 s{sPX+2}, {256*2*20480}")
    a.e(f"s_mov_b32 s{sPX+3}, 0x00020000")
    a.e(f"s_add_u32 s{sFL}, s4, {FL_OFF}")
    a.e(f"s_addc_u32 s{sFL+1}, s5, 0")
    a.e(f"s_mov_b32 s{sFL+2}, 65536")
    a.e(f"s_mov_b32 s{sFL+3}, 0x00020000")
    a.e(f"s_mul_i32 s{sM0}, s{sWv}, 5120")
    a.e(f"s_mul_i32 s{sT}, s{sWv}, {16*1280}")
    for i in range(5):
        a.e(f"v_add_u32 v3, {64*i}, v2")
        a.e(f"v_mul_u32_u24 v4, 3277, v3")
        a.e(f"v_lshrrev_b32 v4, 16, v4")
        a.e(f"v_mul_u32_u24 v5, 20, v4")
        a.e(f"v_sub_u32 v5, v3, v5")
        a.e(f"v_bfe_u32 v7, v4, 2, 1")
        a.e(f"v_lshlrev_b32 v7, 1, v7")
        a.e(f"v_xor_b32 v5, v5, v7")
        a.e(f"v_mul_u32_u24 v6, 1280, v4")
        a.e(f"v_lshl_add_u32 v6, v5, 4, v6")
        a.e(f"v_add_u32 v6, s{sT}, v6")
        if i in (1, 2, 3):
            a.e(f"v_subrev_u32 v{vD+i}, {1024*i}, v6")
        else:
            a.e(f"v_mov_b32 v{vD+i}, v6")
    a.e("v_lshrrev_b32 v4, 2, v2")
    a.e("v_mul_u32_u24 v4, 320, v4")
    a.e("v_and_b32 v5, 3, v2")
    a.e("v_lshl_add_u32 v4, v5, 3, v4")
    a.e("v_bfe_u32 v5, v2, 4, 1")
    a.e("v_lshlrev_b32 v5, 5, v5")
    a.e(f"v_add_u32 v{vA}, v4, v5")
    a.e(f"v_sub_u32 v{vAo}, v4, v5")
    a.e(f"v_add_u32 v{vAo}, 32, v{vAo}")
    a.e(f"v_add_u32 v{vA2}, {3*SL}, v{vA}")
    a.e(f"v_add_u32 v{vAo2}, {3*SL}, v{vAo}")
    a.e(f"s_mul_i32 s{sT}, s{sWv}, 12288")
    a.e(f"v_lshlrev_b32 v8, 4, v2")
    a.e(f"v_add_u32 v{vB}, s{sT}, v8")
    a.e(f"v_add_u32 v{vB2}, 6144, v{vB}")
    a.e(f"v_lshlrev_b32 v{vPX}, 4, v2")
    a.e("v_and_b32 v3, 15, v2")
    a.e(f"s_lshl_b32 s{sT}, s{sWv}, 5")
    a.e(f"v_add_u32 v8, s{sT}, v3")
    a.e(f"v_mul_u32_u24 v8, 2560, v8")
    a.e("v_lshrrev_b32 v4, 4, v2")
    a.e(f"v_lshl_add_u32 v{vST}, v4, 4, v8")
    R = RING
    DD = R - 2
    BD = DD - 1
    def dma(t):
        slot = t % R
        a.e(f"s_add_u32 m0, s{sM0}, {slot*SL}")
        a.e("s_nop 0")
        if 'k2nod' in FLAGS: return
        for i in range(4):
            off = f" offset:{1024*i}" if i else ""
            a.vmem(f"buffer_load_dwordx4 v{vD+i}, s[{sWo}:{sWo+3}], s61 offen{off} lds", ("T", t % 6))
        a.e(f"s_add_u32 m0, s{sM0}, {slot*SL+4096}")
        a.e("s_nop 0")
        a.vmem(f"buffer_load_dwordx4 v{vD+4}, s[{sWo}:{sWo+3}], s61 offen lds", ("T", t % 6))
        a.e(f"s_add_u32 s61, s61, {64*1280}")
    def bload(t):
        bb = BB + (t % NB)*16
        if 'k2nob' in FLAGS: return
        for qt in range(2):
            for ks in range(2):
                off = f" offset:{1024*ks}" if ks else ""
                a.vmem(f"buffer_load_dwordx4 {vr(bb+(ks*2+qt)*4,4)}, v{vB2 if qt else vB}, s[{sOw}:{sOw+3}], s62 offen{off}", ("B", t % 6))
        a.e(f"s_add_u32 s62, s62, {2048 if t % 3 < 2 else 49152-4096}")
    a.e("s_mov_b32 s61, 0")
    a.e("s_mov_b32 s62, 0")
    for k in range(80):
        a.e(f"v_mov_b32 v{ACC+k}, 0")
    for t in range(-DD, 1):
        if t + BD >= 0: bload(t + BD)
        dma(t + DD)
    LOOK = 6
    NI = 20
    def frag_issue(t, i):
        slot = t % R
        ks, nt = i // 10, i % 10
        o0 = (slot % 3)*SL + (32*ks)*320 + (nt >> 1)*64
        o1 = o0 + 16*320
        if slot < 3: va = vAo if nt & 1 else vA
        else: va = vAo2 if nt & 1 else vA2
        buf = AB + ((t*NI + i) % 8)*4
        a.lds(f"ds_read_b64_tr_b16 {vr(buf,2)}, v{va} offset:{o0}", ("F", (t*NI+i) % 120))
        a.lds(f"ds_read_b64_tr_b16 {vr(buf+2,2)}, v{va} offset:{o1}", ("F", (t*NI+i) % 120))
    a.wait_vm([("T", 0)])
    a.e("s_barrier")
    for i in range(LOOK): frag_issue(0, i)
    if 'stamp' in FLAGS:
        stamp_begin(a)
        a.e("s_waitcnt lgkmcnt(0)")
        a.lg = []
        for i in range(LOOK): frag_issue(0, i)
    a.e("s_mov_b32 s60, 0")
    a.label("K2_LOOP")
    vm0, lg0 = list(a.vm), list(a.lg)
    for t in range(6):
        for i in range(NI):
            if i == 0: a.wait_vm([("B", t % 6)])
            a.wait_lg(("F", (t*NI+i) % 120))
            ks, nt = i // 10, i % 10
            for qt in range(2):
                if 'k2nom' not in FLAGS:
                    a.e(f"{MF} {vr(acc(nt,qt),4)}, {vr(AB+((t*NI+i)%8)*4,4)}, {vr(BB+(t%NB)*16+(ks*2+qt)*4,4)}, {vr(acc(nt,qt),4)}")
            j = i + LOOK
            if j == NI:
                a.wait_vm([("T", (t+1) % 6)])
                a.e("s_barrier")
                bload(t + 1 + BD); dma(t + 1 + DD)
            if j < NI: frag_issue(t, j)
            else: frag_issue(t + 1, j - NI)
    assert a.vm == vm0, (a.vm, vm0)
    assert a.lg == lg0, (a.lg, lg0)
    a.e("s_add_u32 s60, s60, 1")
    a.e("s_cmp_lt_u32 s60, 8")
    a.e("s_cbranch_scc1 K2_LOOP")
    a.wait_vm_all(); a.wait_lg_all()
    if 'stamp' in FLAGS:
        stamp_end(a, "K2_NOSTAMP", sWv, 255, 17, 8)
    a.nop(12)
    a.e(f"s_lshr_b32 s50, s{sWv}, 1")
    a.e(f"s_and_b32 s51, s{sWv}, 1")
    a.e(f"s_cmp_eq_u32 s50, s{sHH}")
    a.e("s_cbranch_scc1 K2_RECV")
    a.e("s_lshl_b32 s52, s2, 1")
    a.e("s_add_u32 s52, s52, s51")
    a.e("s_mul_i32 s53, s52, 20480")
    for k in range(20):
        if k % 4 == 0 and k: a.e("s_add_u32 s53, s53, 4096")
        a.e(f"buffer_store_dwordx4 {vr(ACC+4*k,4)}, v{vPX}, s[{sPX}:{sPX+3}], s53 offen offset:{(k%4)*1024} sc1")
    a.e("s_waitcnt vmcnt(0)")
    a.e("s_lshl_b32 s52, s52, 7")
    a.e(f"v_mov_b32 v{T0}, 1")
    a.e(f"v_mov_b32 v{T1}, 0")
    a.e("s_mov_b64 exec, 1")
    a.e(f"buffer_store_dword v{T0}, v{T1}, s[{sFL}:{sFL+3}], s52 offen sc1")
    a.e("s_waitcnt vmcnt(0)")
    a.e("s_endpgm")
    a.label("K2_RECV")
    a.e("s_xor_b32 s52, s2, 32")
    a.e("s_lshl_b32 s52, s52, 1")
    a.e("s_add_u32 s52, s52, s51")
    a.e("s_mul_i32 s53, s52, 20480")
    a.e("s_lshl_b32 s52, s52, 7")
    a.e(f"v_mov_b32 v{T1}, 0")
    a.label("K2_POLL")
    a.e(f"buffer_load_dword v{T0}, v{T1}, s[{sFL}:{sFL+3}], s52 offen sc1")
    a.e("s_waitcnt vmcnt(0)")
    a.e(f"v_readfirstlane_b32 s54, v{T0}")
    a.e("s_cmp_eq_u32 s54, 1")
    a.e("s_cbranch_scc1 K2_GOT")
    a.e("s_sleep 2")
    a.e("s_branch K2_POLL")
    a.label("K2_GOT")
    for k in range(20):
        if k % 4 == 0 and k: a.e("s_add_u32 s53, s53, 4096")
        a.e(f"buffer_load_dwordx4 {vr(BB+4*k,4)}, v{vPX}, s[{sPX}:{sPX+3}], s53 offen offset:{(k%4)*1024} sc1")
    for k in range(20):
        a.e(f"s_waitcnt vmcnt({19-k})")
        for j in range(4):
            a.e(f"v_add_f32 v{ACC+4*k+j}, v{ACC+4*k+j}, v{BB+4*k+j}")
    for qt in range(2):
        for m in range(5):
            d = BB + (qt*5 + m)*4
            for h in range(2):
                src = acc(2*m + h, qt)
                a.e(f"v_cvt_pk_bf16_f32 v{d+2*h}, v{src}, v{src+1}")
                a.e(f"v_cvt_pk_bf16_f32 v{d+2*h+1}, v{src+2}, v{src+3}")
    a.nop(1)
    for f in range(10):
        d = BB + f*4
        a.e(f"v_permlane32_swap_b32 v{d}, v{d+2}")
        a.e(f"v_permlane32_swap_b32 v{d+1}, v{d+3}")
    a.nop(1)
    for f in range(10):
        d = BB + f*4
        a.e(f"v_permlane16_swap_b32 v{d}, v{d+2}")
        a.e(f"v_permlane16_swap_b32 v{d+1}, v{d+3}")
    a.nop(1)
    a.e(f"s_mov_b32 s55, {16*2560}")
    for qt in range(2):
        for m in range(5):
            d = BB + (qt*5 + m)*4
            so = "s55" if qt else "0"
            a.e(f"buffer_store_dwordx4 {vr(d,4)}, v{vST}, s[{sOut}:{sOut+3}], {so} offen offset:{m*64}")
    a.label("K2_END")
    a.e("s_endpgm")

if __name__ == "__main__":
    out = sys.argv[1]
    ks = [("k1", kernel1, 1024, 256, 6*SLOT, 256), ("k2", kernel2, 256, 256, RING*20480, 256)]
    if 'nok1' in FLAGS: ks = ks[1:]
    if 'nok2' in FLAGS: ks = ks[:1]
    build(ks, out)
```

```python
import sys, os, math
sys.path.insert(0, "work")
from lib import *
import gen3
from gen3 import kernel2, RING, FL_OFF, CSC, THR, MF

SLOT = 12288
NWG1 = 512

def kernel1(a):
    ACC = 0; QF = 96; S = 144; P = 176; AB = 184; NM = 216; vL = 224
    XB = S
    vKp = 226; vVp = 228; vXp = 232; vA = 234
    vDKV = 238; vDW = 241; vDX = 244; vST = 245
    T = 246
    sK, sV, sW, sX, sO = 24, 28, 32, 36, 40
    sWv = 44; sWM = 45; sC = 46; sT = 47; sT2 = 48; sT3 = 49; sTH = 51
    sTB = 52
    sXM = 58; sXB = 59
    sU = 61
    soW = 62; soX = 63; soKV = 64
    LOOK = env('LOOK', 6); SP = env('SP', 3)
    NOSM = 'nosm' in FLAGS; NOKV = 'nokv' in FLAGS; NOCOMP = 'nocomp' in FLAGS
    TL2 = 'tl2' in FLAGS
    TL = 'tl' in FLAGS
    PRIO = 'prio' in FLAGS
    PA = env('PA', 1); PB = env('PB', 0); PKV = env('PKV', 2); PW1 = env('PW1', 0)
    def acc(mt, qt): return ACC + (mt*2 + qt)*4
    def qf(s, qt): return QF + (s*2 + qt)*4
    def sreg(b, kt, qt): return S + b*16 + (kt*2 + qt)*4
    def xf(c, hs, qt): return XB + (c & 1)*16 + (hs*2 + qt)*4
    a.e(f"s_cmp_ge_u32 s2, {NWG1}")
    a.e("s_cbranch_scc1 K1_END")
    if TL: a.e("s_memrealtime s[72:73]")
    a.e("s_load_dwordx8 s[8:15], s[0:1], 0")
    a.e("s_load_dwordx8 s[16:23], s[0:1], 40")
    a.e("s_load_dwordx2 s[4:5], s[0:1], 96")
    a.e("v_lshrrev_b32 v1, 6, v0")
    a.e("v_and_b32 v2, 63, v0")
    a.e("s_nop 0")
    a.e(f"v_readfirstlane_b32 s{sWv}, v1")
    a.e("s_and_b32 s7, s2, 31")
    a.e("s_lshr_b32 s6, s2, 5")
    a.e(f"s_mul_i32 s{soW}, s7, 384")
    a.e(f"s_mul_i32 s{soX}, s6, 163840")
    a.e(f"s_mul_i32 s{soKV}, s2, 196608")
    a.e(f"s_mul_i32 s{sT}, s{sWv}, 192")
    for i in range(3):
        a.e(f"s_add_u32 s{sT2}, s{sT}, {64*i}")
        a.e(f"v_add_u32 v3, s{sT2}, v2")
        a.e("v_mul_u32_u24 v4, 2731, v3")
        a.e("v_lshrrev_b32 v4, 16, v4")
        a.e("v_mul_u32_u24 v5, 24, v4")
        a.e("v_sub_u32 v5, v3, v5")
        a.e("v_and_b32 v6, 6, v4")
        a.e("v_xor_b32 v5, v5, v6")
        a.e("v_lshlrev_b32 v5, 4, v5")
        if i: a.e(f"v_subrev_u32 v5, {1024*i}, v5")
        a.e("v_mul_u32_u24 v6, 384, v4")
        a.e(f"v_add_u32 v{vDKV+i}, v5, v6")
        a.e("v_bfe_u32 v6, v4, 2, 2")
        a.e("v_lshlrev_b32 v6, 3, v6")
        a.e("v_lshrrev_b32 v7, 4, v4")
        a.e("v_lshl_add_u32 v6, v7, 2, v6")
        a.e("v_and_b32 v7, 3, v4")
        a.e("v_add_u32 v6, v6, v7")
        a.e("v_mul_u32_u24 v6, 12288, v6")
        a.e(f"v_add_u32 v{vDW+i}, v5, v6")
    a.e("v_lshrrev_b32 v3, 3, v2")
    a.e("v_and_b32 v4, 6, v3")
    a.e("v_and_b32 v5, 7, v2")
    a.e("v_xor_b32 v5, v5, v4")
    a.e(f"s_lshl_b32 s{sT}, s{sWv}, 5")
    a.e(f"v_add_u32 v3, s{sT}, v3")
    a.e("v_mul_u32_u24 v3, 1280, v3")
    a.e(f"v_lshl_add_u32 v{vDX}, v5, 4, v3")
    a.e(f"s_mul_i32 s{sWM}, s{sWv}, 3072")
    for i in range(6): a.e(f"s_mov_b32 s{sTB+i}, {i*SLOT}")
    a.e(f"s_lshl_b32 s{sT}, s{sWv}, 12")
    a.e(f"s_cmp_lt_u32 s{sWv}, 3")
    a.e(f"s_cselect_b32 s{sXM}, -1, 0")
    a.e(f"s_cselect_b32 s{sXB}, s{sT}, {6*SLOT}")
    a.e(f"s_cselect_b32 s{sXB+1}, s{sT}, {6*SLOT+4096}")
    a.e("s_waitcnt lgkmcnt(0)")
    def set_wx(px, pw, live=None):
        a.e(f"s_add_u32 s{sW}, s{pw}, s{soW}")
        a.e(f"s_addc_u32 s{sW+1}, s{pw+1}, 0")
        a.e(f"s_add_u32 s{sX}, s{px}, s{soX}")
        a.e(f"s_addc_u32 s{sX+1}, s{px+1}, 0")
        a.e(f"s_sub_u32 s{sW+2}, {640*12288}, s{soW}")
        a.e(f"s_mov_b32 s{sX+2}, 163840")
        if live is not None:
            a.e(f"s_cmp_eq_u32 s{live}, 0")
            a.e(f"s_cselect_b32 s{sW+2}, s{sW+2}, 0")
            a.e(f"s_cselect_b32 s{sX+2}, s{sX+2}, 0")
    def set_kv(pk, pv):
        a.e(f"s_add_u32 s{sK}, s{pk}, s{soKV}")
        a.e(f"s_addc_u32 s{sK+1}, s{pk+1}, 0")
        a.e(f"s_add_u32 s{sV}, s{pv}, s{soKV}")
        a.e(f"s_addc_u32 s{sV+1}, s{pv+1}, 0")
    for r in (sK, sV): a.e(f"s_mov_b32 s{r+2}, 196608")
    for r in (sK, sV, sW, sX, sO): a.e(f"s_mov_b32 s{r+3}, 0x00020000")
    set_wx(8, 14)
    set_kv(10, 12)
    a.e(f"s_mov_b32 s{sU}, 0")

    ent = []
    for c in range(10): ent += [("X", c), ("W", 2*c), ("W", 2*c+1)]
    steps = [("W", t) for t in range(20)]
    kv = [("K", 0)]
    for i in range(1, 16): kv += [("K", i), ("V", i-1)]
    kv += [("V", 15)]
    steps += kv
    ent += kv
    NE = len(ent); NS = len(steps)
    assert NE == 62 and NS == 52
    pos_of = {e: i for i, e in enumerate(ent)}
    def firstpos(n):
        kind, idx = steps[n]
        if kind == "W" and idx % 2 == 0: return pos_of[("X", idx//2)]
        return pos_of[steps[n]]
    NT = " nt" if 'nt' in FLAGS else ""

    def dma(pos):
        kind, idx = ent[pos % NE]
        tb = sTB + pos % 6
        if kind in "KV" and NOKV and idx > 1: return
        if kind == "W" and 'now' in FLAGS and idx > 3: return
        if kind == "X" and 'nox' in FLAGS and idx > 1: return
        if kind == "X":
            a.e(f"s_and_b32 s{sT}, s{tb}, s{sXM}")
            a.e(f"s_add_u32 m0, s{sT}, s{sXB + (idx & 1)}")
            for i in range(4):
                a.e(f"s_mov_b32 s{sT3}, {idx*128 + 9216*i}")
                off = f" offset:{1024*i}" if i else ""
                a.vmem(f"buffer_load_dwordx4 v{vDX}, s[{sX}:{sX+3}], s{sT3} offen{off} lds", (kind, idx))
        else:
            a.e(f"s_add_u32 m0, s{tb}, s{sWM}")
            if kind == "W":
                a.e(f"s_mov_b32 s{sT3}, {idx*32*12288}")
                for i in range(3):
                    off = f" offset:{1024*i}" if i else ""
                    a.vmem(f"buffer_load_dwordx4 v{vDW+i}, s[{sW}:{sW+3}], s{sT3} offen{off} lds", (kind, idx))
            else:
                srd = sK if kind == "K" else sV
                a.e(f"s_mov_b32 s{sT3}, {idx*12288}")
                for i in range(3):
                    off = f" offset:{1024*i}" if i else ""
                    a.vmem(f"buffer_load_dwordx4 v{vDKV+i}, s[{srd}:{srd+3}], s{sT3} offen{off}{NT} lds", (kind, idx))

    for p in range(5): dma(p)
    issued_pos = [5]

    a.e("v_and_b32 v3, 15, v2")
    a.e("v_lshrrev_b32 v4, 4, v2")
    a.e("v_and_b32 v5, 6, v3")
    a.e("v_xor_b32 v6, v4, v5")
    a.e("v_lshlrev_b32 v6, 4, v6")
    a.e("v_mul_u32_u24 v7, 384, v3")
    a.e(f"v_add_u32 v{vKp}, v6, v7")
    a.e(f"v_xor_b32 v8, 64, v6")
    a.e(f"v_add_u32 v{vKp+1}, v8, v7")
    a.e("v_lshlrev_b32 v7, 7, v3")
    a.e(f"v_add_u32 v{vXp}, v6, v7")
    a.e(f"v_add_u32 v{vXp+1}, v8, v7")
    a.e("v_lshrrev_b32 v3, 2, v2")
    a.e("v_and_b32 v4, 6, v3")
    a.e("v_lshlrev_b32 v4, 4, v4")
    a.e("v_mul_u32_u24 v5, 384, v3")
    a.e("v_bfe_u32 v6, v2, 1, 1")
    a.e("v_lshl_add_u32 v5, v6, 4, v5")
    a.e("v_and_b32 v6, 1, v2")
    a.e("v_lshl_add_u32 v5, v6, 3, v5")
    for u in range(4):
        a.e(f"v_xor_b32 v6, {u*32}, v4")
        a.e(f"v_add_u32 v{vVp+u}, v5, v6")
    a.e(f"s_mul_i32 s{sT}, s{sWv}, 12288")
    a.e("v_lshlrev_b32 v5, 4, v2")
    a.e(f"v_add_u32 v{vST}, s{sT}, v5")
    a.e(f"s_mov_b32 s{sC}, 0x{f32bits(CSC):08x}")
    a.e(f"s_mov_b32 s{sTH}, 0x{f32bits(THR):08x}")
    a.e(f"s_mul_i32 s{sT}, s2, 49152")
    a.e(f"s_add_u32 s{sO}, s4, s{sT}")
    a.e(f"s_addc_u32 s{sO+1}, s5, 0")
    a.e(f"s_mov_b32 s{sO+2}, 0")
    a.e(f"s_add_u32 s68, s4, {FL_OFF}")
    a.e("s_addc_u32 s69, s5, 0")
    a.e("s_mov_b32 s70, 65536")
    a.e("s_mov_b32 s71, 0x00020000")

    slow_blocks = []
    TLN = [0,1,2,4,6,8,10,12,14,16,18,20,22,24,28,32,36,40,44,48]
    def sync(n):
        kind, idx = steps[n]
        tags = [(kind, idx)]
        hasx = kind == "W" and idx % 2 == 0
        if hasx: tags.append(("X", idx//2))
        tb = sTB + pos_of[(kind, idx)] % 6
        if kind == "K":
            for u in range(2): a.e(f"v_add_u32 v{vA+u}, s{tb}, v{vKp+u}")
        else:
            for u in range(4): a.e(f"v_add_u32 v{vA+u}, s{tb}, v{vVp+u}")
        if hasx:
            c = idx // 2
            a.e(f"s_and_b32 s{sT2}, s{sTB + pos_of[('X', c)] % 6}, s{sXM}")
            a.e(f"s_add_u32 s{sT2}, s{sT2}, s{sXB + (c & 1)}")
            for hs in range(2): a.e(f"v_add_u32 v{T+hs}, s{sT2}, v{vXp+hs}")
        a.wait_lg_all()
        a.wait_vm(tags)
        if 'nobar' not in FLAGS: a.e("s_barrier")
        if hasx and not NOCOMP:
            for qt in range(2):
                a.lds(f"ds_read_b128 {vr(xf(c,0,qt),4)}, v{T} offset:{qt*2048}", ("XF", c, 0))
        if TL2 and n in TLN:
            a.e(f"s_memrealtime s[{60+2*TLN.index(n)}:{61+2*TLN.index(n)}]") if False else None
    def sync_post(n):
        kind, idx = steps[n]
        hasx = kind == "W" and idx % 2 == 0
        if hasx and not NOCOMP:
            c = idx // 2
            for qt in range(2):
                a.lds(f"ds_read_b128 {vr(xf(c,1,qt),4)}, v{T+1} offset:{qt*2048}", ("XF", c, 1))
        lim = firstpos(n) + 5
        while issued_pos[0] <= lim:
            dma(issued_pos[0]); issued_pos[0] += 1
        if n == 30:
            set_wx(16, 22, live=sU)
        if n == 20 and PRIO: a.e(f"s_setprio {PKV}")
        if n == 20 and TL:
            a.e(f"s_cmp_lg_u32 s{sU}, 0")
            a.e("s_cbranch_scc1 K1_TLW1")
            a.e("s_memrealtime s[74:75]")
            a.e("s_branch K1_TLW2")
            a.label("K1_TLW1")
            a.e("s_memrealtime s[78:79]")
            a.label("K1_TLW2")

    def check_ops(i):
        b = i % 2
        v = [sreg(b, kt, qt) + k for qt in range(2) for kt in range(2) for k in range(4)]
        ops = []
        for j in range(5):
            ops.append(f"v_max3_f32 v{T+j}, v{v[3*j]}, v{v[3*j+1]}, v{v[3*j+2]}")
        ops.append(f"v_max3_f32 v{T}, v{T}, v{T+1}, v{v[15]}")
        ops.append(f"v_max3_f32 v{T+2}, v{T+2}, v{T+3}, v{T+4}")
        ops.append(f"v_max_f32 v{T}, v{T}, v{T+2}")
        ops.append(f"v_cmp_lt_f32 vcc, s{sTH}, v{T}")
        return ops
    def exp_ops(i):
        b = i % 2
        ops = []
        seq = []
        for qt in range(2):
            for kt in range(2):
                seq.append((qt, kt, sreg(b, kt, qt)))
        E = []; A = []; C = []
        U = T + 5
        for (qt, kt, r) in seq:
            E.append([f"v_exp_f32 v{r+k}, v{r+k}" for k in range(4)])
            d = U + qt if kt == 0 else U + 2 + qt
            A.append([f"v_add_f32 v{d}, v{r}, v{r+1}",
                      f"v_add_f32 v{U+4}, v{r+2}, v{r+3}",
                      f"v_add_f32 v{d}, v{d}, v{U+4}"]
                     + ([f"v_add_f32 v{U+qt}, v{U+qt}, v{U+2+qt}", f"v_add_f32 v{vL+qt}, v{vL+qt}, v{U+qt}"] if kt == 1 else []))
            C.append([f"v_cvt_pk_bf16_f32 v{P+4*qt+2*kt}, v{r}, v{r+1}", f"v_cvt_pk_bf16_f32 v{P+4*qt+2*kt+1}, v{r+2}, v{r+3}"])
        for j in range(4):
            ops += E[j]
            if j >= 1: ops += A[j-1] + C[j-1]
        ops += A[3] + C[3] + ["s_nop 1"]
        return ops
    def slow_code(i, first):
        b = i % 2
        a.nop(12)
        for qt in range(2):
            v = [sreg(b, kt, qt) + k for kt in range(2) for k in range(4)]
            t0, t1 = T + 2*qt, T + 2*qt + 1
            a.e(f"v_max3_f32 v{t0}, v{v[0]}, v{v[1]}, v{v[2]}")
            a.e(f"v_max3_f32 v{t1}, v{v[3]}, v{v[4]}, v{v[5]}")
            a.e(f"v_max3_f32 v{t0}, v{t0}, v{v[6]}, v{v[7]}")
            a.e(f"v_max_f32 v{t0}, v{t0}, v{t1}")
            a.e(f"v_mov_b32 v{t1}, v{t0}")
        a.nop(2)
        for qt in range(2):
            a.e(f"v_permlane32_swap_b32 v{T+2*qt}, v{T+2*qt+1}")
        a.nop(1)
        for qt in range(2):
            a.e(f"v_max_f32 v{T+2*qt}, v{T+2*qt}, v{T+2*qt+1}")
            a.e(f"v_mov_b32 v{T+2*qt+1}, v{T+2*qt}")
        a.nop(2)
        for qt in range(2):
            a.e(f"v_permlane16_swap_b32 v{T+2*qt}, v{T+2*qt+1}")
        a.nop(1)
        for qt in range(2):
            d = T + 2*qt
            a.e(f"v_max_f32 v{d}, v{d}, v{d+1}")
            if not first: a.e(f"v_max_f32 v{d}, 0, v{d}")
            v = [sreg(b, kt, qt) + k for kt in range(2) for k in range(4)]
            for r in v: a.e(f"v_sub_f32 v{r}, v{r}, v{d}")
            a.e(f"v_sub_f32 v{NM+4*qt}, v{NM+4*qt}, v{d}")
            for k in range(1, 4): a.e(f"v_mov_b32 v{NM+4*qt+k}, v{NM+4*qt}")
            if not first:
                a.e(f"v_sub_f32 v{d+1}, 0, v{d}")
                a.e(f"v_exp_f32 v{d+1}, v{d+1}")
                a.e("s_nop 0")
                a.e(f"v_mul_f32 v{vL+qt}, v{vL+qt}, v{d+1}")
                for mt in range(12):
                    for k in range(4):
                        a.e(f"v_mul_f32 v{acc(mt,qt)+k}, v{acc(mt,qt)+k}, v{d+1}")
        a.nop(2)

    class It: pass
    items = []
    def add_item(n, loads, mf):
        it = It(); it.n = n; it.loads = loads; it.mf = mf; it.pre = []; it.post = []; it.waits = []
        items.append(it); return it
    def spread(its, ops, start=0, end=None):
        its = its[start:end]
        k = len(its)
        per = [[] for _ in range(k)]
        for j, o in enumerate(ops): per[j * k // len(ops)].append(o)
        for it, l in zip(its, per):
            for o in l: it.post.append(o)
    for n, (kind, idx) in enumerate(steps):
        its = []
        if kind == "W" or kind == "V":
            for mt in range(12):
                o = (mt >> 2)*128
                va = vA + (mt & 3)
                loads = [lambda d, o=o, va=va: f"ds_read_b64_tr_b16 {vr(d,2)}, v{va} offset:{o}",
                         lambda d, o=o, va=va: f"ds_read_b64_tr_b16 {vr(d+2,2)}, v{va} offset:{o+6144}"]
                def mf(buf, mt=mt, kind=kind, idx=idx):
                    for qt in range(2):
                        bsrc = xf(idx//2, idx & 1, qt) if kind == "W" else P + 4*qt
                        cc = "0" if idx == 0 else vr(acc(mt, qt), 4)
                        a.e(f"{MF} {vr(acc(mt,qt),4)}, {vr(buf,4)}, {vr(bsrc,4)}, {cc}")
                its.append(add_item(n, loads, mf))
            if kind == "W": its[0].waits.append(("XF", idx//2, idx & 1))
        else:
            b = idx % 2
            for s in range(6):
                for kt in range(2):
                    o = kt*6144 + (s >> 1)*128
                    va = vA + (s & 1)
                    loads = [lambda d, o=o, va=va: f"ds_read_b128 {vr(d,4)}, v{va} offset:{o}"]
                    def mf(buf, s=s, kt=kt, b=b):
                        for qt in range(2):
                            cc = vr(NM + 4*qt, 4) if s == 0 else vr(sreg(b, kt, qt), 4)
                            a.e(f"{MF} {vr(sreg(b,kt,qt),4)}, {vr(buf,4)}, {vr(qf(s,qt),4)}, {cc}")
                    its.append(add_item(n, loads, mf))
        if kind == "K" and idx == 0:
            def qconv():
                a.nop(8)
                for k in range(96): a.e(f"v_mul_f32 v{ACC+k}, s{sC}, v{ACC+k}")
                for k in range(8): a.e(f"v_mov_b32 v{NM+k}, 0")
                a.e(f"v_mov_b32 v{vL}, 0")
                a.e(f"v_mov_b32 v{vL+1}, 0")
                for s in range(6):
                    for qt in range(2):
                        d = qf(s, qt)
                        for h in range(2):
                            src = acc(2*s + h, qt)
                            a.e(f"v_cvt_pk_bf16_f32 v{d+2*h}, v{src}, v{src+1}")
                            a.e(f"v_cvt_pk_bf16_f32 v{d+2*h+1}, v{src+2}, v{src+3}")
                a.nop(1)
                for s in range(6):
                    for qt in range(2):
                        d = qf(s, qt)
                        a.e(f"v_permlane32_swap_b32 v{d}, v{d+2}")
                        a.e(f"v_permlane32_swap_b32 v{d+1}, v{d+3}")
                a.nop(1)
                for s in range(6):
                    for qt in range(2):
                        d = qf(s, qt)
                        a.e(f"v_permlane16_swap_b32 v{d}, v{d+2}")
                        a.e(f"v_permlane16_swap_b32 v{d+1}, v{d+3}")
                a.nop(2)
            its[0].pre.append(qconv)
        if kind == "K" and idx == 1 and not NOSM:
            its[0].pre.append(lambda: slow_code(0, True))
        if kind == "K" and idx >= 1 and not NOSM:
            spread(its, exp_ops(idx - 1))
        if kind == "V" and idx < 15 and not NOSM:
            spread(its, check_ops(idx + 1), 3, 9)
            def br(i=idx+1):
                a.e(f"s_cbranch_vccnz K1_SLOW{i}")
                a.label(f"K1_BACK{i}")
                slow_blocks.append(i)
            its[-1].post.append(br)
        if kind == "V" and idx == 15 and not NOSM:
            def lastexp():
                for o in exp_ops(15): a.e(o)
                a.nop(2)
            its[0].pre.append(lastexp)

    NI = len(items); NB = 8
    assert NI % NB == 0
    def issue(j):
        it = items[j % NI]
        buf = AB + (j % NB)*4
        if NOCOMP: return
        for ins in it.loads: a.lds(ins(buf), ("F", j % NI))
    def do_mf(i):
        it = items[i]
        if NOCOMP: return
        for h in it.pre: h()
        for w in it.waits: a.wait_lg(w)
        a.wait_lg(("F", i))
        it.mf(AB + (i % NB)*4)
    def do_post(i):
        if NOCOMP: return
        for o in items[i].post:
            if callable(o): o()
            else: a.e(o)

    def epilogue():
        a.nop(8)
        for qt in range(2):
            a.e(f"v_mov_b32 v{T+qt}, v{vL+qt}")
        a.nop(2)
        for qt in range(2):
            a.e(f"v_permlane32_swap_b32 v{vL+qt}, v{T+qt}")
        a.nop(1)
        for qt in range(2):
            a.e(f"v_add_f32 v{vL+qt}, v{vL+qt}, v{T+qt}")
            a.e(f"v_mov_b32 v{T+qt}, v{vL+qt}")
        a.nop(2)
        for qt in range(2):
            a.e(f"v_permlane16_swap_b32 v{vL+qt}, v{T+qt}")
        a.nop(1)
        for qt in range(2):
            a.e(f"v_add_f32 v{vL+qt}, v{vL+qt}, v{T+qt}")
        for qt in range(2):
            a.e(f"v_rcp_f32 v{T+qt}, v{vL+qt}")
        a.e("s_mov_b32 s66, 4096")
        a.e("s_mov_b32 s67, 8192")
        STF = os.environ.get('STF', '')
        for qt in range(2):
            for m in range(6):
                d = QF + (qt*6 + m)*4
                for h in range(2):
                    src = acc(2*m + h, qt)
                    for k in range(4): a.e(f"v_mul_f32 v{src+k}, v{src+k}, v{T+qt}")
                for h in range(2):
                    src = acc(2*m + h, qt)
                    a.e(f"v_cvt_pk_bf16_f32 v{d+2*h}, v{src}, v{src+1}")
                    a.e(f"v_cvt_pk_bf16_f32 v{d+2*h+1}, v{src+2}, v{src+3}")
                f = qt*6 + m
                so = "0" if f < 4 else ("s66" if f < 8 else "s67")
                if 'nost' not in FLAGS:
                    a.vmem(f"buffer_store_dwordx4 {vr(d,4)}, v{vST}, s[{sO}:{sO+3}], {so} offen offset:{(f*1024)%4096}{STF}", ("O", f))

    a.label("K1_LOOP")
    vm_top = list(a.vm)
    sync(0)
    nb = LOOK - SP
    for j in range(nb): issue(j)
    sync_post(0)
    snap_vm, snap_lg = list(a.vm), list(a.lg)
    a.e(f"s_cmp_lg_u32 s{sU}, 0")
    a.e("s_cbranch_scc1 K1_TAIL")
    if PRIO:
        a.e("s_cmp_lt_u32 s2, 256")
        a.e("s_cbranch_scc1 K1_PA")
        a.e(f"s_setprio {PB}")
        a.e("s_branch K1_PB")
        a.label("K1_PA")
        a.e(f"s_setprio {PA}")
        a.label("K1_PB")
    for j in range(nb, LOOK): issue(j)
    a.e(f"s_lshl_b32 s{sT}, s2, 7")
    a.e(f"v_mov_b32 v{T+2}, 0")
    a.e("s_mov_b64 exec, 1")
    a.vmem(f"buffer_store_dword v{T+2}, v{T+2}, s[68:71], s{sT} offen", ("O", 0))
    if 'nost' not in FLAGS:
        for f in range(1, 12):
            a.vmem(f"buffer_store_dword v{T+2}, v{T+2}, s[{sO}:{sO+3}], 0 offen", ("O", f))
    a.e("s_mov_b64 exec, -1")
    a.e(f"s_mov_b32 s{sO+2}, 49152")
    a.e("s_branch K1_BODY")
    vmA, lgA = list(a.vm), list(a.lg)
    a.vm, a.lg = snap_vm, snap_lg
    a.label("K1_TAIL")
    if TL: a.e("s_memrealtime s[76:77]")
    for k in range(SP):
        do_mf(NI - SP + k)
        issue(nb + k)
        do_post(NI - SP + k)
    epilogue()
    if PRIO: a.e(f"s_setprio {PW1}")
    if 'nost' in FLAGS: a.vm.append(("O", 0))
    a.e(f"s_add_u32 s{sO}, s{sO}, {512*49152}")
    a.e(f"s_addc_u32 s{sO+1}, s{sO+1}, 0")
    assert a.vm == vmA, (a.vm, vmA)
    assert a.lg == lgA, (a.lg, lgA)
    a.label("K1_BODY")
    first_of = {}
    for j, it in enumerate(items): first_of.setdefault(it.n, j)
    nxt = LOOK
    for i in range(NI - SP):
        do_mf(i)
        n = items[i].n
        f = first_of.get(n + 1, NI)
        if i == f - SP - 1 and n + 1 < NS:
            sync(n + 1)
            while nxt < i + LOOK + 1: issue(nxt); nxt += 1
            sync_post(n + 1)
        else:
            lim = i + LOOK + 1
            if i < f - SP - 1: lim = min(lim, f)
            lim = min(lim, NI)
            while nxt < lim: issue(nxt); nxt += 1
        do_post(i)
    assert nxt == NI
    assert issued_pos[0] == NE + 5, issued_pos
    a.e(f"s_cmp_lg_u32 s{sU}, 0")
    a.e("s_cbranch_scc1 K1_FINAL")
    a.e(f"s_mov_b32 s{sU}, 1")
    set_kv(18, 20)
    a.e(f"s_mov_b32 s{sT}, s{sTB}")
    a.e(f"s_mov_b32 s{sT2}, s{sTB+1}")
    for i in range(4): a.e(f"s_mov_b32 s{sTB+i}, s{sTB+i+2}")
    a.e(f"s_mov_b32 s{sTB+4}, s{sT}")
    a.e(f"s_mov_b32 s{sTB+5}, s{sT2}")
    assert a.vm == vm_top, (a.vm, vm_top)
    a.e("s_branch K1_LOOP")
    a.label("K1_FINAL")
    a.wait_lg_all()
    for k in range(SP):
        do_mf(NI - SP + k)
        do_post(NI - SP + k)
    epilogue()
    a.e("s_waitcnt vmcnt(0)")
    if TL:
        a.e("s_memrealtime s[80:81]")
        a.e("s_getreg_b32 s82, hwreg(HW_REG_HW_ID)")
        a.e("s_getreg_b32 s83, hwreg(HW_REG_XCC_ID)")
        a.e(f"s_add_u32 s84, s4, {100*1024*1024}")
        a.e("s_addc_u32 s85, s5, 0")
        a.e("s_mov_b32 s86, 65536")
        a.e("s_mov_b32 s87, 0x00020000")
        a.e("s_waitcnt lgkmcnt(0)")
        a.e(f"s_cmp_lg_u32 s{sWv}, 0")
        a.e("s_cbranch_scc1 K1_END")
        for i, r in enumerate((72, 74, 76, 80, 82, 83, 78, 78)): a.e(f"v_mov_b32 v{i}, s{r}")
        a.e("s_lshl_b32 s88, s2, 5")
        a.e("v_mov_b32 v8, 0")
        a.e("s_mov_b64 exec, 1")
        a.e("buffer_store_dwordx4 v[0:3], v8, s[84:87], s88 offen")
        a.e("buffer_store_dwordx4 v[4:7], v8, s[84:87], s88 offen offset:16")
    a.label("K1_END")
    a.e("s_endpgm")
    for i in slow_blocks:
        a.label(f"K1_SLOW{i}")
        slow_code(i, False)
        a.e(f"s_branch K1_BACK{i}")

if __name__ == "__main__":
    out = sys.argv[1]
    ks = [("k1", kernel1, NWG1, 256, 81920, 256), ("k2", kernel2, 256, 256, RING*20480, 256)]
    if 'nok1' in FLAGS: ks = ks[1:]
    if 'nok2' in FLAGS: ks = ks[:1]
    build(ks, out)
```
